```python
import torch

def _softmax(x, axis=-1):
    return torch.softmax(x, dim=axis)
def _gelu(x):
    return torch.nn.functional.gelu(x, approximate="tanh")
def _silu(x):
    return torch.nn.functional.silu(x)
def _sigmoid(x):
    return torch.sigmoid(x)
def _layernorm(x, axis=-1, eps=1e-5):
    m = x.mean(dim=axis, keepdim=True)
    v = x.var(dim=axis, keepdim=True, unbiased=False)
    return (x - m) / torch.sqrt(v + eps)
def _scatter_add(tgt, idx, src, axis=0):
    return tgt.clone().index_add_(axis, idx, src)
def _segment_sum(src, seg, n):
    out = torch.zeros((n,) + src.shape[1:], dtype=src.dtype)
    return out.index_add_(0, seg, src)
def _pad(x, pw):
    flat = tuple(v for pair in reversed(pw) for v in pair)
    return torch.nn.functional.pad(x, flat)

kernel_name = 'parallel_sum__linear_attn_block__glu_gated_glu__prompt'

def setup_inputs():

    _w = (lambda a: (lambda t: t.to(torch.bfloat16) if t.is_floating_point() else t)(torch.as_tensor(a)))
    def _A_setup():
        B, S, D = 1, 2048, 640
        return {
            "x": _w((lambda *s: torch.randn(*s, dtype=torch.bfloat16) * 0.05)(B, S, D)),
            "wqkv": _w((lambda *s: torch.randn(*s, dtype=torch.bfloat16) * 0.2)(D, 3 * D)),
            "wo": _w((lambda *s: torch.randn(*s, dtype=torch.bfloat16) * 0.2)(D, D)),
        }
    _A_in = _A_setup()

    def _B_setup():
        B, S, D, F = 1, 2048, 640, 1728
        return {
            "x": _w((lambda *s: torch.randn(*s, dtype=torch.bfloat16) * 0.05)(B, S, D)),
            "w_gate": _w((lambda *s: torch.randn(*s, dtype=torch.bfloat16) * 0.05)(D, F)),
            "w_up": _w((lambda *s: torch.randn(*s, dtype=torch.bfloat16) * 0.05)(D, F)),
            "w_down": _w((lambda *s: torch.randn(*s, dtype=torch.bfloat16) * 0.05)(F, D)),
        }
    _B_in = _B_setup()

    return {
        "A_x": _A_in["x"],
        "A_wqkv": _A_in["wqkv"],
        "A_wo": _A_in["wo"],
        "B_x": _B_in["x"],
        "B_w_gate": _B_in["w_gate"],
        "B_w_up": _B_in["w_up"],
        "B_w_down": _B_in["w_down"],
    }

def reference(A_x, A_wqkv, A_wo, B_x, B_w_gate, B_w_up, B_w_down):
    def _A_ref(x, wqkv, wo):
        B, S, D = x.shape
        H = 32; Dh = D // H
        qkv = (lambda x, *d: x.permute(*d))((x @ wqkv).reshape(B, S, 3, H, Dh), 2, 0, 3, 1, 4)
        q, k, v = qkv[0], qkv[1], qkv[2]
        phi = lambda t: torch.where(t > 0, t + 1, torch.exp(t)) + 1e-6
        pq, pk = phi(q), phi(k)
        kv = torch.einsum("bhsd,bhse->bhde", pk, v)
        z = torch.einsum("bhsd->bhd", pk)
        num = torch.einsum("bhqd,bhde->bhqe", pq, kv)
        den = torch.einsum("bhqd,bhd->bhq", pq, z)[..., None] + 1e-6
        o = num / den
        return (lambda x, *d: x.permute(*d))(o, 0, 2, 1, 3).reshape(B, S, D) @ wo

    def _B_ref(x, w_gate, w_up, w_down):
        g = torch.einsum("bsd,df->bsf", x, w_gate)
        u = torch.einsum("bsd,df->bsf", x, w_up)
        h = _sigmoid(g) * u
        return torch.einsum("bsf,fd->bsd", h, w_down)

    x = A_x
    xn = _layernorm(x, axis=-1)
    return x + _A_ref(xn, A_wqkv, A_wo) + _B_ref(xn, B_w_gate, B_w_up, B_w_down)
```

```python
class Asm:
    def __init__(self):
        self.lines=[]
        self.lg_issued=0; self.lg_done=0
        self.vm_issued=0; self.vm_done=0
        self.uid=0
    def e(self,s): self.lines.append(s)
    def c(self,s): self.lines.append('; '+s)
    def label(self,s): self.lines.append(s+':')
    def newlabel(self,p='L'):
        self.uid+=1; return f'{p}_{self.uid}'
    def ds(self,s):
        self.e(s); self.lg_issued+=1; return self.lg_issued
    def vm(self,s,cond=False):
        self.e(s)
        if cond: return None
        self.vm_issued+=1; return self.vm_issued
    def wait_lg(self,tok):
        if tok is None or tok<=self.lg_done: return
        n=self.lg_issued-tok
        n=min(n,15)
        self.e(f's_waitcnt lgkmcnt({n})'); self.lg_done=self.lg_issued-n
    def wait_vm(self,tok):
        if tok is None or tok<=self.vm_done: return
        n=min(self.vm_issued-tok,63)
        self.e(f's_waitcnt vmcnt({n})'); self.vm_done=self.vm_issued-n
    def wait_all_lg(self):
        self.e('s_waitcnt lgkmcnt(0)'); self.lg_done=self.lg_issued
    def wait_all_vm(self):
        self.e('s_waitcnt vmcnt(0)'); self.vm_done=self.vm_issued
    def nop(self,n):
        while n>0:
            k=min(n,16); self.e(f's_nop {k-1}'); n-=k
    def text(self): return '\n'.join(self.lines)+'\n'
def vr(b,n=1): return f'v{b}' if n==1 else f'v[{b}:{b+n-1}]'
def ar(b,n=1): return f'a{b}' if n==1 else f'a[{b}:{b+n-1}]'
def sr(b,n=1): return f's{b}' if n==1 else f's[{b}:{b+n-1}]'
def kernel_desc(name,vgpr,accum,sgpr=102):
    return f'''.amdhsa_kernel {name}
  .amdhsa_next_free_vgpr {vgpr}
  .amdhsa_next_free_sgpr {sgpr}
  .amdhsa_accum_offset {accum}
  .amdhsa_group_segment_fixed_size 0
  .amdhsa_kernarg_size 80
  .amdhsa_user_sgpr_count 2
  .amdhsa_user_sgpr_kernarg_segment_ptr 1
  .amdhsa_system_sgpr_workgroup_id_x 1
.end_amdhsa_kernel
'''
```

```python
from asmlib import *
from layout import *
import struct
def f32(x): return '0x%08x'%struct.unpack('<I',struct.pack('<f',x))[0]
NLN=128; NRP=185; NWG=NLN+NRP
def gen_k0(name='k0_kernel'):
    a=Asm()
    a.e('.p2align 8'); a.e(f'.globl {name}'); a.e(f'.type {name},@function'); a.label(name)
    a.e(f's_cmp_ge_u32 s2, {NWG}'); a.e(f's_cbranch_scc1 {name}_end')
    a.e('s_load_dwordx16 s[8:23], s[0:1], 0'); a.e('s_load_dwordx2 s[24:25], s[0:1], 72')
    pX,pQKV,pWO,pG,pU,pWD,pWS=8,10,12,16,18,20,24
    a.e('v_and_b32 v1, 63, v0'); a.e('v_lshrrev_b32 v2, 6, v0'); a.e('v_and_b32 v3, 15, v1'); a.e('v_lshrrev_b32 v4, 4, v1')
    a.e('v_readfirstlane_b32 s3, v2')
    a.e('v_lshlrev_b32 v5, 4, v1')
    a.e('s_waitcnt lgkmcnt(0)')
    def mk(srd,ptr,off,size):
        if off: a.e(f's_add_u32 s{srd}, s{ptr}, {off:#x}'); a.e(f's_addc_u32 s{srd+1}, s{ptr+1}, 0')
        else: a.e(f's_mov_b32 s{srd}, s{ptr}'); a.e(f's_mov_b32 s{srd+1}, s{ptr+1}')
        a.e(f's_mov_b32 s{srd+2}, {size:#x}'); a.e(f's_mov_b32 s{srd+3}, 0x20000')
    a.e('s_lshl_b32 s4, s2, 8'); a.e('v_add_u32 v6, s4, v0')
    mk(28,pQKV,0,640*PQ); mk(32,pG,0,640*PG); mk(36,pU,0,640*PG)
    a.e('v_lshlrev_b32 v7, 7, v6')
    a.e('buffer_load_dword v60, v7, s[28:31], 0 offen')
    a.e(f'v_subrev_u32 v7, {640*PQ}, v7')
    a.e('buffer_load_dword v61, v7, s[32:35], 0 offen')
    a.e(f'v_subrev_u32 v7, {640*PG}, v7')
    a.e('buffer_load_dword v62, v7, s[36:39], 0 offen')
    a.e('s_getpc_b64 s[40:41]'); a.e('s_mov_b32 s42, CODE_BYTES_ALL'); a.e('s_mov_b32 s43, 0x20000')
    a.e(f'v_subrev_u32 v7, {640*PG}, v7')
    a.e('buffer_load_dword v63, v7, s[40:43], 0 offen')
    a.e(f's_cmp_ge_u32 s2, {NLN}'); a.e(f's_cbranch_scc1 {name}_rp')
    mk(40,pX,0,2048*1280); mk(44,pWS,XN_OFF,XN_SZ)
    a.e('s_lshl_b32 s4, s2, 4'); a.e('v_add_u32 v7, s4, v3'); a.e('s_movk_i32 s5, 1280'); a.e('v_mul_lo_u32 v7, v7, s5'); a.e('v_lshl_add_u32 v7, v4, 4, v7')
    a.e('s_mul_i32 s5, s3, 320')
    for i in range(5): t=a.vm(f'buffer_load_dwordx4 {vr(16+4*i,4)}, v7, s[40:43], s5 offen offset:{64*i}')
    a.e('v_mov_b32 v8, 0'); a.e('v_mov_b32 v9, 0')
    a.wait_vm(t)
    for i in range(20):
        a.e(f'v_lshlrev_b32 v{40+2*i}, 16, v{16+i}'); a.e(f'v_and_b32 v{41+2*i}, 0xffff0000, v{16+i}')
        a.e(f'v_add_f32 v8, v8, v{40+2*i}'); a.e(f'v_add_f32 v8, v8, v{41+2*i}')
    for (r,t0) in ((8,10),):
        a.e(f'v_mov_b32 v10, v8'); a.e('s_nop 1'); a.e('v_permlane32_swap_b32 v8, v10'); a.e('s_nop 1'); a.e('v_add_f32 v8, v8, v10')
        a.e(f'v_mov_b32 v10, v8'); a.e('s_nop 1'); a.e('v_permlane16_swap_b32 v8, v10'); a.e('s_nop 1'); a.e('v_add_f32 v8, v8, v10')
    a.e('v_lshlrev_b32 v11, 2, v3'); a.e('s_lshl_b32 s4, s3, 6'); a.e('v_add_u32 v12, s4, v11')
    a.ds('ds_write_b32 v12, v8'); a.wait_all_lg(); a.e('s_barrier')
    for w in range(4): a.ds(f'ds_read_b32 v{80+w}, v11 offset:{64*w}')
    a.wait_all_lg()
    a.e('v_add_f32 v80, v80, v81'); a.e('v_add_f32 v82, v82, v83'); a.e('v_add_f32 v80, v80, v82'); a.e(f'v_mul_f32 v80, {f32(1/640)}, v80')
    for i in range(40):
        a.e(f'v_sub_f32 v{40+i}, v{40+i}, v80'); a.e(f'v_fma_f32 v9, v{40+i}, v{40+i}, v9')
    a.e(f'v_mov_b32 v10, v9'); a.e('s_nop 1'); a.e('v_permlane32_swap_b32 v9, v10'); a.e('s_nop 1'); a.e('v_add_f32 v9, v9, v10')
    a.e(f'v_mov_b32 v10, v9'); a.e('s_nop 1'); a.e('v_permlane16_swap_b32 v9, v10'); a.e('s_nop 1'); a.e('v_add_f32 v9, v9, v10')
    a.ds('ds_write_b32 v12, v9 offset:256'); a.wait_all_lg(); a.e('s_barrier')
    for w in range(4): a.ds(f'ds_read_b32 v{81+w}, v11 offset:{256+64*w}')
    a.wait_all_lg()
    a.e('v_add_f32 v81, v81, v82'); a.e('v_add_f32 v83, v83, v84'); a.e('v_add_f32 v81, v81, v83')
    a.e(f'v_mul_f32 v81, {f32(1/640)}, v81'); a.e(f'v_add_f32 v81, {f32(1e-5)}, v81'); a.e('v_rsq_f32 v81, v81'); a.e('s_nop 0')
    a.e('s_lshr_b32 s4, s2, 1'); a.e('s_mul_i32 s4, s4, 40'); a.e('s_and_b32 s5, s2, 1'); a.e('s_add_u32 s4, s4, s5'); a.e('s_mul_i32 s5, s3, 10'); a.e('s_add_u32 s4, s4, s5'); a.e('s_lshl_b32 s4, s4, 10')
    for i in range(5):
        for j in range(4):
            k=4*i+j
            a.e(f'v_mul_f32 v{40+2*k}, v{40+2*k}, v81'); a.e(f'v_mul_f32 v{41+2*k}, v{41+2*k}, v81')
            a.e(f'v_cvt_pk_bf16_f32 v{16+k}, v{40+2*k}, v{41+2*k}')
        a.vm(f'buffer_store_dwordx4 {vr(16+4*i,4)}, v5, s[44:47], s4 offen')
        if i<4: a.e('s_add_u32 s4, s4, 2048')
    a.e(f's_branch {name}_end')
    a.label(f'{name}_rp')
    mk(40,pWO,0,640*1280); mk(44,pWD,0,1728*1280); mk(48,pWS,W2F_OFF,W2F_SZ); mk(52,pWS,KV_OFF,KV_SZ)
    a.e(f's_sub_u32 s4, s2, {NLN}'); a.e('s_lshl_b32 s5, s4, 8'); a.e('v_add_u32 v7, s5, v0'); a.e('v_lshlrev_b32 v7, 4, v7')
    for i in range(4): a.e(f'v_mov_b32 v{8+i}, 0')
    a.e('buffer_store_dwordx4 v[8:11], v7, s[52:55], 0 offen')
    a.e('s_lshl_b32 s4, s4, 2'); a.e('s_add_u32 s4, s4, s3')
    a.e('s_cmp_ge_u32 s4, 740'); a.e(f's_cbranch_scc1 {name}_end')
    a.e('s_mul_i32 s5, s4, 205'); a.e('s_lshr_b32 s5, s5, 11')
    a.e('s_mul_i32 s6, s5, 10'); a.e('s_sub_u32 s6, s4, s6')
    a.e('s_cmp_lt_u32 s5, 20')
    for i in range(3): a.e(f's_cselect_b32 s{56+i}, s{40+i}, s{44+i}')
    a.e('s_mov_b32 s59, 0x20000')
    a.e('s_cselect_b32 s7, 0, 20'); a.e('s_sub_u32 s7, s5, s7'); a.e('s_mul_i32 s7, s7, 40960'); a.e('s_lshl_b32 s26, s6, 7'); a.e('s_add_u32 s7, s7, s26')
    a.e('s_cselect_b32 s27, 1, 0')
    a.e('v_lshrrev_b32 v7, 2, v1'); a.e('s_movk_i32 s26, 1280'); a.e('v_mul_lo_u32 v8, v7, s26')
    a.e('v_lshrrev_b32 v7, 3, v7'); a.e('v_lshlrev_b32 v7, 1, v7'); a.e('v_and_b32 v9, 3, v1'); a.e('v_xor_b32 v7, v7, v9'); a.e('v_lshl_add_u32 v8, v7, 4, v8')
    a.e('s_lshl_b32 s26, s3, 12')
    t=None
    for img in range(2):
        for half in range(2):
            a.e(f's_add_u32 m0, s26, {img*2048+half*1024}')
            a.e(f's_add_u32 s27, s7, {img*64+half*16*1280}')
            t=a.vm('buffer_load_dwordx4 v8, s[56:59], s27 offen lds')
    a.e('v_lshrrev_b32 v9, 2, v3'); a.e('v_and_b32 v10, 3, v3')
    a.e('v_lshl_add_u32 v11, v4, 3, v9'); a.e('v_lshlrev_b32 v11, 6, v11'); a.e('v_and_b32 v12, 1, v4'); a.e('v_lshl_add_u32 v11, v12, 5, v11'); a.e('v_lshl_add_u32 v11, v10, 3, v11')
    a.e('v_add_u32 v13, 256, v11')
    a.e('v_lshl_add_u32 v14, v4, 2, v9'); a.e('v_lshlrev_b32 v14, 6, v14'); a.e('v_lshrrev_b32 v12, 1, v4'); a.e('v_lshl_add_u32 v14, v12, 5, v14'); a.e('v_lshl_add_u32 v14, v10, 3, v14')
    a.e('v_add_u32 v15, 1024, v14')
    a.e('s_cmp_lt_u32 s5, 20'); a.e('s_cselect_b64 vcc, -1, 0')
    a.e('v_cndmask_b32 v11, v11, v14, vcc'); a.e('v_cndmask_b32 v13, v13, v15, vcc')
    a.e('v_add_u32 v11, s26, v11'); a.e('v_add_u32 v13, s26, v13')
    a.e('v_xor_b32 v14, 32, v11'); a.e('v_xor_b32 v15, 32, v13')
    a.wait_vm(t)
    for img in range(2):
        for hf in range(2):
            d=16+4*(2*img+hf)
            a.ds(f'ds_read_b64_tr_b16 {vr(d,2)}, v{14 if hf else 11} offset:{img*2048}')
            a.ds(f'ds_read_b64_tr_b16 {vr(d+2,2)}, v{15 if hf else 13} offset:{img*2048}')
    a.wait_all_lg()
    a.e('s_mul_i32 s26, s5, 40'); a.e('s_lshl_b32 s27, s6, 2'); a.e('s_add_u32 s26, s26, s27'); a.e('s_lshl_b32 s26, s26, 10')
    for i in range(4): a.vm(f'buffer_store_dwordx4 {vr(16+4*i,4)}, v5, s[48:51], s26 offen offset:{i*1024}')
    a.label(f'{name}_end'); a.e('s_endpgm')
    return a.text(), kernel_desc(name,96,96,64)
```

```python
from asmlib import *
from layout import *
import struct
def f32(x): return '0x%08x'%struct.unpack('<I',struct.pack('<f',x))[0]
LOG2E=1.4426950408889634
SLOT0=[0,36864,73728,110592]
SLOT1=[73728,122880,0,98304]
STG=24576
ONES=147456
LDS_TOTAL=148480
PKP=272
PK_B=STG; V_B=STG+80*PKP
def slot(g): return SLOT0[g%4] if g<10 else SLOT1[(g-10)%4]
vT32a,vT32b,vT16a,vT16b=1,2,3,4
vX=5
vW32,vW16,vW32b,vW16b=6,7,8,9
vL16=10; vTMP=11; vM0,vM1,vM2,vM3=12,13,14,15
NR=8
RING=16
ACC=48
sW,sR,sC,sRB,sJOB=3,4,5,6,7
pXX,pQKV,pWO,pBX,pG,pU,pWD,pOUT,pDBG,pWS=8,10,12,14,16,18,20,22,24,26
srdX,srdQ,srdG,srdU,srdACT,srdKV,srdST=28,32,36,40,44,48,52
sM32,sMX,sX0,sM16=56,57,58,96
srdGU=92
sO=60
sACT,sP0,sP1=68,69,70
sCB=71
sT=76
class Group:
    def __init__(s,kind,P=0,swapped=False,wofs=0):
        s.kind=kind; s.P=P; s.swapped=swapped; s.wofs=wofs
        s.U = 2*P if kind=='gu' else 5
        if kind=='gu':
            im=[]; t=[]
            if P>=2: im+= [('G',32,0,0),('U',32,4096,0)]; t+=[(0,0),(1,0),(0,1),(1,1)]
            if P==3: im+= [('G',16,8192,64),('U',16,10240,64)]; t+=[(2,0),(3,0)]
            s.images=im; s.tiles=t
        else:
            s.images=[('Q',32,0,0),('Q',32,4096,64),('Q',16,8192,128)]
            s.tiles=[(0,0),(0,1),(1,0),(1,1),(2,0)]
def groups_of(typ,c):
    if typ=='B':
        return [Group('gu',3,wofs=0),Group('gu',3,wofs=0)] if c==0 else [Group('gu',2,wofs=12288),Group('gu',3,wofs=12288)]
    return [Group('plain',swapped=True,wofs=0),Group('plain',wofs=0)] if c==0 else [Group('plain',swapped=True,wofs=10240),Group('gu',3,wofs=10240)]
def pit(G): return PQ if G.kind=='plain' else PG

class Prog:
    def __init__(p,a,typ,c,opts):
        p.a=a; p.typ=typ; p.c=c; p.o=opts; p.origin={}
        p.groups=groups_of(typ,c); p.all=[groups_of(typ,0),groups_of(typ,1)]
        p.p0=pit(p.all[0][0])
    def addr(p,reg,absoff,base):
        o=p.origin.get(reg,0)
        if not (0<=absoff-o<=65535):
            d=(base-o)&0xffffffff
            p.a.e(f'v_add_u32 v{reg}, {d:#x}, v{reg}'); p.origin[reg]=base; o=base
        return f'v{reg}', absoff-o
    def srd(p,k): return sr({'G':srdG,'U':srdU,'Q':srdQ}[k],4)
    def patt(p,G,w): return ((vW32 if w==32 else vW16) if pit(G)==p.p0 else (vW32b if w==32 else vW16b))
    def loader_of(p,h,grp):
        m=p.o.get('dmamode','own')
        return h if m=='own' else 1
    def dma_ops(p,g,toks):
        a=p.a; grp=g//10; base=slot(g); ops=[]
        if p.o.get('nodma') and g>=3: return []
        if grp==0:
            m=p.o.get('dmamode','own')
            idx = [2*p.c,2*p.c+1] if m=='own' else ([0,1,2,3] if p.c==1 else [])
            if idx and not (p.o.get('nox') and g>=3):
                def f(idx=idx):
                    a.e(f's_add_u32 m0, s{sMX}, {base+20480:#x}'); a.e(f's_add_u32 s{sX0}, s{sX0}, {0 if (p.o.get("noadv") and g>=3) else 4096}')
                    for i in idx: toks.append(a.vm(f'buffer_load_dwordx4 v{vL16}, {sr(srdX,4)}, s{sX0} offen offset:{i*1024} lds'))
                ops.append(f)
        for h in range(2):
            if p.loader_of(h,grp)!=p.c: continue
            G=p.all[h][grp]
            for i,(k,w,lo,cb) in enumerate(G.images):
                if w==32:
                    if p.o.get('no32') and g>=3: continue
                    def f(i=i,k=k,lo=lo,G=G,h=h):
                        so=sO+4*h+i
                        a.e(f's_add_u32 m0, s{sM32}, {base+G.wofs+lo:#x}')
                        a.e(f's_add_u32 s{so}, s{so}, {0 if (p.o.get("noadv") and g>=3) else 64*pit(G)}')
                        toks.append(a.vm(f'buffer_load_dwordx4 v{p.patt(G,32)}, {p.srd(k)}, s{so} offen lds'))
                    ops.append(f)
                elif i==2:
                    if p.o.get('no16') and g>=3: continue
                    def f(G=G,h=h,lo=lo):
                        so=sO+4*h+2
                        if G.kind=='plain':
                            lb=a.newlabel('L16'); a.e(f's_cmp_lt_u32 s{sR}, 2'); a.e(f's_cbranch_scc0 {lb}')
                        a.e(f's_add_u32 m0, s{sM16+ (0 if G.kind=="gu" else 1)}, {base+G.wofs+lo:#x}')
                        a.e(f's_add_u32 s{so}, s{so}, {0 if (p.o.get("noadv") and g>=3) else 64*pit(G)}')
                        srd = sr(srdGU,4) if G.kind=='gu' else sr(srdQ,4)
                        t=a.vm(f'buffer_load_dwordx4 v{p.patt(G,16)}, {srd}, s{so} offen lds',cond=(G.kind=='plain'))
                        if G.kind=='plain': a.label(lb)
                        else: toks.append(t)
                    ops.append(f)
        return ops
    def set_soffs(p,grp):
        a=p.a
        for h in range(2):
            if p.loader_of(h,grp)!=p.c: continue
            G=p.all[h][grp]; P_=pit(G)
            a.e(f's_mul_i32 s{sT+4}, s{sR}, {16*P_}'); a.e(f's_add_u32 s{sT+4}, s{sT+4}, s{sCB+2*grp+h}'); a.e(f's_sub_u32 s{sT+4}, s{sT+4}, {64*P_}')
            for i,(k,w,lo,cb) in enumerate(G.images):
                if w==32: a.e(f's_add_u32 s{sO+4*h+i}, s{sT+4}, {cb}')
            if len(G.images)>2:
                cb=G.images[2][3]
                if G.kind=='gu': a.e(f's_lshr_b32 s{sT+4}, s{sR}, 1')
                else: a.e(f's_mov_b32 s{sT+4}, s{sR}')
                a.e(f's_mul_i32 s{sT+4}, s{sT+4}, {32*P_}'); a.e(f's_add_u32 s{sT+4}, s{sT+4}, s{sCB+2*grp+h}'); a.e(f's_add_u32 s{sO+4*h+2}, s{sT+4}, {(cb-64*P_)&0xffffffff:#x}')
    def frag_read(p,base,wofs,img,hf,T,dst):
        a=p.a; k,w,lo,cb=img; tok=None
        for rho in range(2):
            if w==32: r,o=p.addr(vT32b if hf else vT32a, base+wofs+lo+T*2048+rho*256, base)
            else: r,o=p.addr(vT16b if rho else vT16a, base+wofs+lo+T*1024, base)
            tok=a.ds(f'ds_read_b64_tr_b16 {vr(dst+2*rho,2)}, {r} offset:{o}')
        return tok

def lane_patterns(a,pitch,d32,d16):
    a.e(f's_movk_i32 s{sT}, {pitch}')
    a.e(f'v_lshrrev_b32 v0, 6, v{vL16}')
    a.e(f'v_mul_lo_u32 v{d32}, v0, s{sT}')
    a.e(f'v_lshrrev_b32 v0, 3, v0'); a.e(f'v_lshlrev_b32 v0, 5, v0')
    a.e(f'v_and_b32 v{vTMP}, 0x30, v{vL16}'); a.e(f'v_xor_b32 v0, v0, v{vTMP}'); a.e(f'v_add_u32 v{d32}, v{d32}, v0')
    a.e(f'v_lshrrev_b32 v0, 5, v{vL16}')
    a.e(f'v_lshrrev_b32 v{vTMP}, 3, v0'); a.e(f'v_and_b32 v{vTMP}, 1, v{vTMP}'); a.e(f'v_lshlrev_b32 v{vTMP}, 2, v{vTMP}'); a.e(f'v_xor_b32 v0, v0, v{vTMP}')
    a.e(f'v_mul_lo_u32 v{d16}, v0, s{sT}'); a.e(f'v_and_b32 v{vTMP}, 16, v{vL16}'); a.e(f'v_add_u32 v{d16}, v{d16}, v{vTMP}')

def gen_k1(name='k1_kernel',opts=None):
    opts=opts or {}
    a=Asm()
    a.e('.p2align 8'); a.e(f'.globl {name}'); a.e(f'.type {name},@function'); a.label(name)
    a.e('s_cmp_ge_u32 s2, 256'); a.e(f's_cbranch_scc1 {name}_end')
    a.e('s_load_dwordx16 s[8:23], s[0:1], 0'); a.e('s_load_dwordx4 s[24:27], s[0:1], 64')
    if not opts.get('notouch'):
        a.e(f's_getpc_b64 s[{srdST}:{srdST+1}]'); a.e(f's_mov_b32 s{srdST+2}, CODE_BYTES_K1'); a.e(f's_mov_b32 s{srdST+3}, 0x20000')
        a.e('v_lshlrev_b32 v95, 7, v0')
        a.e(f'buffer_load_dword v94, v95, {sr(srdST,4)}, 0 offen'); a.e('v_add_u32 v95, 0x10000, v95')
        a.e(f'buffer_load_dword v93, v95, {sr(srdST,4)}, 0 offen')
    L,S_,KG,R4,C4,T0,T1=48,49,50,51,52,53,54
    a.e(f'v_and_b32 v{L}, 63, v0'); a.e(f'v_lshrrev_b32 v{T0}, 6, v0')
    a.e(f'v_and_b32 v{S_}, 15, v{L}'); a.e(f'v_lshrrev_b32 v{KG}, 4, v{L}')
    a.e(f'v_readfirstlane_b32 s{sW}, v{T0}')
    a.e(f'v_lshrrev_b32 v{R4}, 2, v{S_}'); a.e(f'v_and_b32 v{C4}, 3, v{S_}')
    a.e(f's_and_b32 s{sR}, s{sW}, 3'); a.e(f's_lshr_b32 s{sC}, s{sW}, 2')
    a.e(f's_and_b32 s{sT}, s2, 7'); a.e(f's_lshr_b32 s{sT+1}, s2, 3')
    a.e(f's_and_b32 s{sRB}, s{sT}, 1'); a.e(f's_lshl_b32 s{sRB}, s{sRB}, 3'); a.e(f's_and_b32 s{sT+2}, s{sT+1}, 7'); a.e(f's_add_u32 s{sRB}, s{sRB}, s{sT+2}')
    a.e(f's_lshr_b32 s{sJOB}, s{sT}, 1'); a.e(f's_lshl_b32 s{sJOB}, s{sJOB}, 2'); a.e(f's_lshr_b32 s{sT+2}, s{sT+1}, 3'); a.e(f's_add_u32 s{sJOB}, s{sJOB}, s{sT+2}')
    if opts.get('samejob'):
        a.e(f's_mov_b32 s{sRB}, 0'); a.e(f's_and_b32 s{sJOB}, s{sJOB}, 8')
    a.e(f'v_lshlrev_b32 v{vL16}, 4, v{L}')
    a.e(f'v_lshlrev_b32 v{T0}, 3, v{KG}'); a.e(f'v_add_u32 v{T0}, v{T0}, v{R4}')
    a.e(f'v_and_b32 v{T1}, 1, v{KG}')
    a.e(f'v_lshlrev_b32 v{vT32a}, 6, v{T0}'); a.e(f'v_lshl_add_u32 v{vT32a}, v{T1}, 5, v{vT32a}'); a.e(f'v_lshl_add_u32 v{vT32a}, v{C4}, 3, v{vT32a}')
    a.e(f'v_xor_b32 v{vT32b}, 32, v{vT32a}')
    a.e(f'v_lshl_add_u32 v{T0}, v{T1}, 2, v{T0}'); a.e(f'v_lshlrev_b32 v{vT16a}, 5, v{T0}'); a.e(f'v_lshl_add_u32 v{vT16a}, v{C4}, 3, v{vT16a}')
    a.e(f'v_xor_b32 v{vT16b}, 128, v{vT16a}')
    a.e(f's_lshl_b32 s{sMX}, s{sR}, 12'); a.e(f's_add_u32 s{sT}, s{sMX}, 20480'); a.e(f'v_add_u32 v{vX}, s{sT}, v{vL16}')
    a.e(f's_lshl_b32 s{sM32}, s{sR}, 10'); a.e(f's_lshl_b32 s{sM16+1}, s{sR}, 10')
    a.e(f's_and_b32 s{sT}, s{sR}, 1'); a.e(f's_lshl_b32 s{sT}, s{sT}, 11'); a.e(f's_lshr_b32 s{sT+1}, s{sR}, 1'); a.e(f's_lshl_b32 s{sT+1}, s{sT+1}, 10'); a.e(f's_add_u32 s{sM16}, s{sT}, s{sT+1}')
    a.e(f's_lshl_b32 s{sT}, s{sRB}, 2'); a.e(f's_add_u32 s{sT}, s{sT}, s{sR}'); a.e(f's_mul_i32 s{sX0}, s{sT}, {40*1024}'); a.e(f's_sub_u32 s{sX0}, s{sX0}, 4096'); a.e(f's_mul_i32 s{sACT}, s{sT}, {148*1024}')
    for i in range(4): a.e(f'v_mov_b32 v{60+i}, 0x3f803f80')
    a.e(f'v_lshlrev_b32 v{T0}, 4, v0'); a.e(f'v_add_u32 v{T0}, {ONES}, v{T0}')
    a.e(f'v_cmp_gt_u32 vcc, 16, v0'); a.e(f's_and_saveexec_b64 s[{sT}:{sT+1}], vcc')
    lz=a.newlabel('Lz'); a.e(f's_cbranch_execz {lz}')
    a.e(f'ds_write_b128 v{T0}, v[60:63]')
    a.label(lz); a.e(f's_mov_b64 exec, -1')
    a.e('s_waitcnt lgkmcnt(0)')
    def mk(srd,ptr,off,size):
        if off: a.e(f's_add_u32 s{srd}, s{ptr}, {off:#x}'); a.e(f's_addc_u32 s{srd+1}, s{ptr+1}, 0')
        else: a.e(f's_mov_b32 s{srd}, s{ptr}'); a.e(f's_mov_b32 s{srd+1}, s{ptr+1}')
        a.e(f's_mov_b32 s{srd+2}, {size:#x}'); a.e(f's_mov_b32 s{srd+3}, 0x20000')
    mk(srdX,pWS,XN_OFF,XN_SZ); mk(srdQ,pQKV,0,640*PQ); mk(srdG,pG,0,640*PG); mk(srdU,pU,0,640*PG)
    mk(srdACT,pWS,ACT_OFF,ACT_SZ); mk(srdKV,pWS,KV_OFF,KV_SZ); mk(srdST,pWS,STAMP_OFF,STAMP_SZ)
    a.e(f's_bitcmp1_b32 s{sR}, 0')
    for i in range(2): a.e(f's_cselect_b32 s{srdGU+i}, s{pU+i}, s{pG+i}')
    a.e(f's_mov_b32 s{srdGU+2}, {640*PG:#x}'); a.e(f's_mov_b32 s{srdGU+3}, 0x20000')
    if opts.get('samecode'): a.e(f's_mov_b32 s{sC}, 0')
    a.e(f's_cmp_lt_u32 s{sJOB}, 8'); a.e(f's_cbranch_scc1 {name}_A')
    a.e(f's_cmp_eq_u32 s{sC}, 0'); a.e(f's_cbranch_scc0 {name}_B1'); a.e(f's_branch {name}_B0')
    a.label(f'{name}_A'); a.e(f's_cmp_eq_u32 s{sC}, 0'); a.e(f's_cbranch_scc0 {name}_A1'); a.e(f's_branch {name}_A0')
    for typ,c in (('B',0),('B',1),('A',0),('A',1)):
        a.label(f'{name}_{typ}{c}')
        a.lg_issued=a.lg_done=0; a.vm_issued=a.vm_done=0
        program(a,typ,c,opts)
        a.e(f's_branch {name}_end')
    a.label(f'{name}_end'); a.e('s_endpgm')
    a.e(f'.set CODE_BYTES_K1, {name}_end - {name}')
    return a.text(), kernel_desc(name,256,96)

def program(a,typ,c,opts):
    p=Prog(a,typ,c,opts); G0,G1=p.groups
    nst=[0]
    def stamp():
        if opts.get('stamps'):
            a.e(f's_{"memtime" if opts.get("cyc") else "memrealtime"} s[{sT+12}:{sT+13}]'); a.e('s_waitcnt lgkmcnt(0)'); a.lg_done=a.lg_issued
            a.e(f'v_mov_b32 v{vTMP}, s{sT+12}'); a.e(f's_lshl_b32 s{sT+11}, s2, 3'); a.e(f's_add_u32 s{sT+11}, s{sT+11}, s{sW}'); a.e(f's_lshl_b32 s{sT+11}, s{sT+11}, 7')
            a.e(f'v_mov_b32 v0, s{sT+11}')
            a.vm(f'buffer_store_dword v{vTMP}, v0, {sr(srdST,4)}, 0 offen offset:{4*nst[0]}'); nst[0]+=1
    def barrier(): a.e('s_barrier')
    lane_patterns(a,p.p0,vW32,vW16)
    if typ=='A': lane_patterns(a,PG,vW32b,vW16b)
    if typ=='B':
        a.e(f's_sub_u32 s{sT}, s{sJOB}, 8'); a.e(f's_mul_i32 s{sT}, s{sT}, 21'); a.e(f's_lshr_b32 s{sT}, s{sT}, 1'); a.e(f's_add_u32 s{sT}, s{sT}, 24')
        a.e(f's_add_u32 s{sP0}, s{sT}, {0 if c==0 else 3}'); a.e(f's_add_u32 s{sP1}, s{sT}, {5 if c==0 else 8}')
        for i,o in enumerate((0,3,5,8)): a.e(f's_add_u32 s{sCB+i}, s{sT}, {o}'); a.e(f's_lshl_b32 s{sCB+i}, s{sCB+i}, 5')
    else:
        a.e(f's_mul_i32 s{sT}, s{sJOB}, 160'); a.e(f's_mul_i32 s{sP1}, s{sJOB}, 3')
        a.e(f's_add_u32 s{sCB}, s{sT}, 1280'); a.e(f's_add_u32 s{sCB+1}, s{sT}, 2560'); a.e(f's_mov_b32 s{sCB+2}, s{sT}'); a.e(f's_lshl_b32 s{sCB+3}, s{sP1}, 5')
    p.set_soffs(0)
    stamp()
    dt={}
    for g in range(3):
        dt[g]=[]
        for f in p.dma_ops(g,dt[g]): f()
    a.wait_all_lg()
    xtok={}
    def x_ops(g):
        base=slot(g); ops=[]
        for T in range(2):
            for sg in range(2):
                def f(T=T,sg=sg):
                    r,o=p.addr(vX, base+T*2048+sg*1024, base)
                    xtok[(2*g+T,sg)]=a.ds(f'ds_read_b128 {ar(((2*g+T)*2+sg)*4,4)}, {r} offset:{o}')
                ops.append(f)
        return ops
    a.wait_vm(dt[0][-1] if dt[0] else None); barrier()
    stamp()
    for f in x_ops(0): f()
    extra={}
    def add_extra(g,f): extra.setdefault(g,[]).append(f)
    ctx=dict(p=p,a=a,typ=typ,c=c,opts=opts,add_extra=add_extra,barrier=barrier,stamp=stamp)
    pend=[]
    def make_slots(g,nsl):
        R=[[] for _ in range(nsl)]; B=[[] for _ in range(nsl)]
        if g+1<10:
            for i,f in enumerate(x_ops(g+1)): R[i//2].append(f)
        d=[]
        if g+3<20:
            dt[g+3]=[]
            if g+3==10: d.append(lambda: p.set_soffs(1))
            d+=p.dma_ops(g+3,dt[g+3])
        for i,f in enumerate(d): B[0 if opts.get('burst') else (nsl-1-i*2 if opts.get('late') else (i*nsl)//max(1,len(d)))].append(f)
        ex=extra.get(g,[])
        for i,f in enumerate(ex): B[min(nsl-1,1+(i*(nsl-1))//max(1,len(ex)))].append(f)
        return list(zip(R,B))
    DIST=opts.get('dist',NR-1)
    for grp in range(2):
        G=p.groups[grp]; U=G.U; ftok={}
        def rd_frag(n):
            gl,rem=divmod(n,2*U); T,t=divmod(rem,U); im,hf=G.tiles[t]
            ftok[n]=p.frag_read(slot(grp*10+gl),G.wofs,G.images[im],hf,T,RING+4*(n%NR))
        N=20*U; st=dict(nxt=0)
        def prefetch(ok,n):
            while st['nxt']<min(N,n+DIST+1) and (st['nxt']//(2*U))<=ok:
                rd_frag(st['nxt']); st['nxt']+=1
        stage_ok=0
        if opts.get('rep') and grp==1:
            a.e(f's_mov_b32 s{sT+15}, 0'); a.label(f'Lrep_{typ}{c}'); a.wait_all_lg(); a.wait_all_vm()
            saved_origin=dict(p.origin); saved_pend=list(pend)
        prefetch(0,-1)
        for n in range(N):
            gl,rem=divmod(n,2*U); T,t=divmod(rem,U); g=grp*10+gl
            if rem==0 and gl in (0,2,4,6,8): stamp()
            cur = pend.pop(0) if pend else ([],[])
            prefetch(stage_ok,n-1)
            a.wait_lg(ftok[n])
            mf=[]
            for sg in range(2):
                if grp==0: a.wait_lg(xtok[(2*gl+T,sg)])
                acc=vr(ACC+(2*t+sg)*4,4); W=vr(RING+4*(n%NR),4); X=ar(((2*gl+T)*2+sg)*4,4)
                C='0' if (gl==0 and T==0) else acc
                if G.swapped: mf.append(f'v_mfma_f32_16x16x32_bf16 {acc}, {X}, {W}, {C}')
                else: mf.append(f'v_mfma_f32_16x16x32_bf16 {acc}, {W}, {X}, {C}')
            if opts.get('ilv'):
                mark=len(a.lines)
                for f in cur[0]: f()
                prefetch(stage_ok,n)
                for f in cur[1]: f()
                body=a.lines[mark:]; del a.lines[mark:]
                h=(len(body)+1)//2
                while 0<h<len(body) and not (body[h].startswith('ds_read') or (body[h].startswith('s_add_u32 m0') and not body[h-1].startswith('s_cbranch'))): h+=1
                nx = N>n+1 and DIST>=2
                a.e(mf[0]); a.lines+=body[:h]; a.e(mf[1]); a.lines+=body[h:]
            else:
                for m in mf: a.e(m)
                for f in cur[0]: f()
                prefetch(stage_ok,n)
                for f in cur[1]: f()
            if rem==U-1:
                assert not pend, (g,len(pend))
                if g+1<20:
                    if not opts.get('nowait'): a.wait_vm(dt[g+1][-1] if dt[g+1] else None)
                    barrier(); stage_ok=gl+1
                    U2=p.groups[(g+1)//10].U
                    pend=make_slots(g,U+U2)
        stamp()
        if opts.get('rep') and grp==1:
            for reg,o in saved_origin.items():
                cur=p.origin.get(reg,0)
                if cur!=o: a.e(f'v_add_u32 v{reg}, {(o-cur)&0xffffffff:#x}, v{reg}'); p.origin[reg]=o
            for reg in list(p.origin):
                if reg not in saved_origin and p.origin[reg]!=0:
                    a.e(f'v_add_u32 v{reg}, {(0-p.origin[reg])&0xffffffff:#x}, v{reg}'); p.origin[reg]=0
            a.wait_all_lg(); a.wait_all_vm(); a.e('s_barrier')
            a.e(f's_add_u32 s{sT+15}, s{sT+15}, 1'); a.e(f's_cmp_lt_u32 s{sT+15}, 2'); a.e(f's_cbranch_scc1 Lrep_{typ}{c}')
        epilogue(ctx,grp)
        stamp()
    assert not pend
    stamp()

def phi4(a,r0):
    T=RING
    for i in range(4): a.e(f'v_mul_f32 v{T+i}, {f32(LOG2E)}, v{r0+i}')
    for i in range(4): a.e(f'v_min_f32 v{T+i}, 0, v{T+i}')
    for i in range(4): a.e(f'v_exp_f32 v{T+i}, v{T+i}')
    for i in range(4): a.e(f'v_add_f32 v{r0+i}, {f32(1e-6)}, v{r0+i}')
    for i in range(4): a.e(f'v_max_f32 v{r0+i}, {f32(1e-6)}, v{r0+i}')
    for i in range(4): a.e(f'v_add_f32 v{r0+i}, v{r0+i}, v{T+i}')

def store_tile(a,rA,rB,dst4,soff,off):
    a.e(f'v_cvt_pk_bf16_f32 v{dst4}, v{rA}, v{rA+1}'); a.e(f'v_cvt_pk_bf16_f32 v{dst4+1}, v{rA+2}, v{rA+3}')
    a.e(f'v_cvt_pk_bf16_f32 v{dst4+2}, v{rB}, v{rB+1}'); a.e(f'v_cvt_pk_bf16_f32 v{dst4+3}, v{rB+2}, v{rB+3}')
    a.e('s_nop 1')
    a.e(f'v_permlane16_swap_b32 v{dst4}, v{dst4+2}'); a.e(f'v_permlane16_swap_b32 v{dst4+1}, v{dst4+3}')
    a.e('s_nop 0')
    a.vm(f'buffer_store_dwordx4 {vr(dst4,4)}, v{vL16}, {sr(srdACT,4)}, s{soff} offen offset:{off}')

def epilogue(ctx,grp):
    a=ctx['a']; p=ctx['p']; G=p.groups[grp]; c=ctx['c']
    a.nop(6)
    if G.kind=='gu':
        sP=(sP0,sP1)[grp]
        a.e(f's_lshl_b32 s{sT}, s{sP}, 10'); a.e(f's_add_u32 s{sT}, s{sT}, s{sACT}'); a.e(f's_add_u32 s{sT}, s{sT}, {40*1024}')
        for j in range(G.P):
            for sg in range(2):
                g0=ACC+(4*j+sg)*4; u0=ACC+(4*j+2+sg)*4
                for i in range(4): a.e(f'v_mul_f32 v{g0+i}, {f32(-LOG2E)}, v{g0+i}')
                for i in range(4): a.e(f'v_exp_f32 v{g0+i}, v{g0+i}')
                a.e('s_nop 0')
                for i in range(4): a.e(f'v_add_f32 v{g0+i}, 1.0, v{g0+i}')
                for i in range(4): a.e(f'v_rcp_f32 v{g0+i}, v{g0+i}')
                a.e('s_nop 0')
                for i in range(4): a.e(f'v_mul_f32 v{u0+i}, v{u0+i}, v{g0+i}')
            store_tile(a,ACC+(4*j+2)*4,ACC+(4*j+3)*4,RING+4+4*(j%2),sT,j*1024)
    elif not G.swapped:
        a.e(f's_mul_i32 s{sT}, s{sJOB}, {5*1024}'); a.e(f's_add_u32 s{sT}, s{sT}, s{sACT}'); a.e(f's_add_u32 s{sT+1}, s{sT}, 4096')
        for t in range(5):
            for sg in range(2): phi4(a,ACC+(2*t+sg)*4)
            store_tile(a,ACC+(2*t)*4,ACC+(2*t+1)*4,RING+4+4*(t%2),sT if t<4 else sT+1,(t%4)*1024)
    else:
        ctx['barrier']()
        base = PK_B if c==0 else V_B
        a.e(f'v_bfe_u32 v{vM0}, v{vL16}, 4, 4'); a.e(f's_movk_i32 s{sT}, {PKP}'); a.e(f'v_mul_lo_u32 v{vM0}, v{vM0}, s{sT}')
        a.e(f'v_lshrrev_b32 v{vM1}, 8, v{vL16}'); a.e(f'v_lshl_add_u32 v{vM0}, v{vM1}, 3, v{vM0}')
        a.e(f's_lshl_b32 s{sT}, s{sR}, 6'); a.e(f's_add_u32 s{sT}, s{sT}, {base}'); a.e(f'v_add_u32 v{vM0}, s{sT}, v{vM0}')
        for t in range(5):
            for sg in range(2):
                r0=ACC+(2*t+sg)*4
                if c==0: phi4(a,r0)
                d=RING+4+2*((2*t+sg)%4)
                a.e(f'v_cvt_pk_bf16_f32 v{d}, v{r0}, v{r0+1}'); a.e(f'v_cvt_pk_bf16_f32 v{d+1}, v{r0+2}, v{r0+3}')
                a.ds(f'ds_write_b64 v{vM0}, {vr(d,2)} offset:{16*t*PKP+32*sg}')
        a.wait_all_lg(); ctx['barrier']()
        one = ctx['opts'].get('dmamode','own')=='one'
        if one and c==1: return
        for et in ((0,1) if one else (c,)): kv_part(a,et)

def kv_part(a,c):
        a.e(f'v_bfe_u32 v{vM1}, v{vL16}, 4, 4')
        a.e(f'v_lshrrev_b32 v{vM2}, 8, v{vL16}'); a.e(f'v_lshlrev_b32 v{vM2}, 4, v{vM2}')
        a.e(f's_mul_i32 s{sT}, s{sR}, {20*PKP}'); a.e(f's_movk_i32 s{sT+1}, {PKP}')
        a.e(f'v_mul_lo_u32 v{vM0}, v{vM1}, s{sT+1}'); a.e(f'v_add_u32 v{vM0}, s{sT}, v{vM0}'); a.e(f'v_add_u32 v{vM0}, v{vM0}, v{vM2}')
        a.e(f'v_add_u32 v{vM3}, {PK_B}, v{vM0}')
        a.e(f'v_add_u32 v{vM0}, {V_B+16*c*PKP}, v{vM0}')
        if c==1:
            a.e(f'v_add_u32 v{vM2}, {ONES}, v{vM2}'); a.e(f'v_cmp_lt_u32 vcc, 3, v{vM1}'); a.e('s_nop 1'); a.e(f'v_cndmask_b32 v{vM0}, v{vM0}, v{vM2}, vcc')
        AF=RING; BF=RING+16
        for ks in range(4): a.ds(f'ds_read_b128 {vr(AF+4*ks,4)}, v{vM0} offset:{64*ks}')
        D=ACC+32+8*c
        tk={}
        for dt_ in range(2):
            for ks in range(4): tk[(dt_,ks)]=a.ds(f'ds_read_b128 {vr(BF+4*ks if dt_==0 else ACC+16+4*ks,4)}, v{vM3} offset:{dt_*16*PKP+64*ks}')
        for dt_ in range(2):
            for ks in range(4):
                a.wait_lg(tk[(dt_,ks)])
                B=vr(BF+4*ks if dt_==0 else ACC+16+4*ks,4)
                a.e(f'v_mfma_f32_16x16x32_bf16 {vr(D+4*dt_,4)}, {vr(AF+4*ks,4)}, {B}, {"0" if ks==0 else vr(D+4*dt_,4)}')
        a.e(f'v_lshrrev_b32 v{vM2}, 8, v{vL16}')
        a.e(f'v_mul_u32_u24 v{vM0}, 320, v{vM2}'); a.e(f'v_lshl_add_u32 v{vM0}, v{vM1}, 2, v{vM0}')
        a.e(f's_lshl_b32 s{sT}, s{sJOB}, 2'); a.e(f's_add_u32 s{sT}, s{sT}, s{sR}'); a.e(f's_mul_i32 s{sT}, s{sT}, {KV_HSTRIDE}'); a.e(f's_add_u32 s{sT}, s{sT}, {16*c*80}')
        BIG=ACC
        a.e(f'v_mov_b32 v{BIG}, 0x7f000000')
        nr=[ACC+1]
        def mkoff(dt_,cls):
            r=nr[0]; nr[0]+=1
            a.e(f'v_mov_b32 v{r}, v{vM0}')
            if dt_==1: a.e(f'v_cmp_gt_u32 vcc, 4, v{vM1}'); a.e('s_nop 1'); a.e(f'v_cndmask_b32 v{r}, v{BIG}, v{r}, vcc')
            if cls is not None: a.e(f'v_cmp_ge_u32 vcc, {cls}, v{vM2}'); a.e('s_nop 1'); a.e(f'v_cndmask_b32 v{r}, v{BIG}, v{r}, vcc')
            return r
        a.nop(4)
        for dt_ in range(2):
            for cls in ((None,) if c==0 else (1,0)):
                r=mkoff(dt_,cls)
                ii = range(4) if c==0 else ([0] if cls==1 else [1,2,3])
                for i in ii: a.vm(f'buffer_atomic_add_f32 v{D+4*dt_+i}, v{r}, {sr(srdKV,4)}, s{sT} offen offset:{i*80+dt_*64}')
```

```python
from asmlib import *
from layout import *
import struct
def f32(x): return '0x%08x'%struct.unpack('<I',struct.pack('<f',x))[0]
def et_ks(et):
    h1=(16*et)//20; h2=(16*et+15)//20
    return list(range((20*h1)//32,(20*h2+19)//32+1))
FRAGS=[(et,ks) for et in range(10) for ks in et_ks(et)]
FIDX={f:i for i,f in enumerate(FRAGS)}
IMG_SZ=18*1024+2*3*256
ZIMG=18*1024
def kv_table():
    tab=[]
    for c in range(8*112):
        h,rem=divmod(c,112)
        if rem>=105: tab.append(0xffffffff); continue
        e,dq=divmod(rem,5); d0=4*dq
        dl=20*h+d0
        ks=dl>>5; kg=(dl&31)>>3; j=dl&7
        if e<20:
            el=20*h+e; et=el>>4
            off=FIDX[(et,ks)]*1024+((el&15)+16*kg)*16+j*2
        else:
            xy=h>>2; i=h&3; ksl=ks-(0 if xy==0 else 2)
            assert 0<=ksl<3
            off=ZIMG+(xy*3+ksl)*256+i*64+kg*16+j*2
        tab.append(off)
    return tab
def gen_k2(name='k2_kernel', NS=5, stamps=False):
    a=Asm(); nst=[0]
    def stamp():
        if stamps: a.e(f's_memrealtime s[{64+2*nst[0]}:{65+2*nst[0]}]'); nst[0]+=1
    a.e(f'.p2align 8'); a.e(f'.globl {name}'); a.e(f'.type {name},@function'); a.label(name)
    a.e('s_cmp_ge_u32 s2, 256'); a.e(f's_cbranch_scc1 {name}_end')
    stamp()
    a.e('s_load_dwordx2 s[4:5], s[0:1], 0'); a.e('s_load_dwordx2 s[6:7], s[0:1], 56'); a.e('s_load_dwordx2 s[8:9], s[0:1], 72')
    a.e('s_getpc_b64 s[40:41]'); a.label(f'{name}_pc')
    a.e(f's_mov_b32 s42, {name}_tabend - {name}_pc'); a.e('s_mov_b32 s43, 0x20000')
    a.e('v_lshlrev_b32 v1, 7, v0'); a.e('buffer_load_dword v250, v1, s[40:43], 0 offen')
    a.e('v_and_b32 v1, 63, v0'); a.e('v_lshrrev_b32 v2, 6, v0'); a.e('v_and_b32 v3, 15, v1'); a.e('v_lshrrev_b32 v4, 4, v1')
    a.e('v_readfirstlane_b32 s3, v2')
    a.e('v_lshrrev_b32 v5, 1, v4'); a.e('v_lshlrev_b32 v5, 10, v5'); a.e('v_and_b32 v6, 1, v4'); a.e('v_lshlrev_b32 v6, 9, v6'); a.e('v_lshlrev_b32 v7, 4, v3')
    a.e('v_add3_u32 v5, v5, v6, v7')
    a.e('v_lshlrev_b32 v6, 4, v1')
    a.e('v_add_u32 v7, 0x1000, v6')
    a.e('s_and_b32 s10, s2, 7'); a.e('s_lshr_b32 s11, s2, 3')
    a.e('s_lshr_b32 s12, s10, 1'); a.e('s_lshl_b32 s12, s12, 3'); a.e('s_and_b32 s13, s11, 7'); a.e('s_add_u32 s12, s12, s13')
    a.e('s_and_b32 s13, s10, 1'); a.e('s_lshl_b32 s13, s13, 2'); a.e('s_lshr_b32 s14, s11, 3'); a.e('s_add_u32 s13, s13, s14')
    a.e('s_mul_i32 s14, s3, 13'); a.e('s_min_u32 s15, s3, 2'); a.e('s_add_u32 s14, s14, s15'); a.e('s_add_u32 s14, s14, 20')
    def offs(P,dA0,dA1,dB):
        a.e(f's_mul_i32 s{dA0}, s12, 296'); a.e(f's_lshl_b32 s15, s{P}, 1'); a.e(f's_add_u32 s{dA0}, s{dA0}, s15'); a.e(f's_lshl_b32 s{dA0}, s{dA0}, 10')
        a.e(f's_add_u32 s{dA1}, s{dA0}, {148*1024}')
        a.e(f's_mul_i32 s{dB}, s{P}, 40'); a.e('s_mul_i32 s15, s13, 5'); a.e(f's_add_u32 s{dB}, s{dB}, s15'); a.e(f's_lshl_b32 s{dB}, s{dB}, 10')
    offs(14,16,17,18)
    a.e('s_mul_i32 s44, s3, 5'); offs(44,45,46,47)
    a.e('s_lshl_b32 s19, s12, 6'); a.e('s_lshl_b32 s15, s3, 4'); a.e('s_add_u32 s19, s19, s15')
    a.e('v_add_u32 v8, s19, v3'); a.e('s_movk_i32 s15, 1280'); a.e('v_mul_lo_u32 v8, v8, s15')
    a.e('s_mul_i32 s15, s13, 160'); a.e('v_lshlrev_b32 v9, 3, v4'); a.e('v_add3_u32 v8, v8, v9, s15')
    a.e('s_mul_i32 s15, s3, 5120'); a.e('v_add_u32 v9, s15, v6'); a.e('v_add_u32 v10, 40960, v9')
    a.e('s_mul_i32 s15, s3, 20480'); a.e('v_add_u32 v11, s15, v6')
    a.e(f's_mul_i32 s48, s3, {IMG_SZ}')
    a.e('s_waitcnt lgkmcnt(0)')
    def mk(srd,p,off,size):
        if off: a.e(f's_add_u32 s{srd}, s{p}, {off:#x}'); a.e(f's_addc_u32 s{srd+1}, s{p+1}, 0')
        else: a.e(f's_mov_b32 s{srd}, s{p}'); a.e(f's_mov_b32 s{srd+1}, s{p+1}')
        a.e(f's_mov_b32 s{srd+2}, {size:#x}'); a.e(f's_mov_b32 s{srd+3}, 0x20000')
    mk(20,8,ACT_OFF,ACT_SZ); mk(24,8,W2F_OFF,W2F_SZ); mk(28,4,0,2048*1280); mk(32,6,0,2048*1280); mk(36,8,KV_OFF,KV_SZ)
    FB=24
    def fr(si,i): return FB+36*si+4*i
    NH=14
    toks={}
    def issue(p,dst_set,sA0,sA1,sB,last_cond=False,adv=True):
        si=dst_set
        if last_cond:
            a.e('s_cmp_lt_u32 s3, 2')
            for r in (sA0,sA1,sB): a.e(f's_cselect_b32 s{r}, s{r}, 0x7f000000')
        a.vm(f'buffer_load_dwordx4 {vr(fr(si,0),4)}, v5, s[20:23], s{sA0} offen')
        a.vm(f'buffer_load_dwordx4 {vr(fr(si,4),4)}, v6, s[24:27], s{sB} offen')
        a.vm(f'buffer_load_dwordx4 {vr(fr(si,1),4)}, v5, s[20:23], s{sA0} offen offset:256')
        a.vm(f'buffer_load_dwordx4 {vr(fr(si,5),4)}, v6, s[24:27], s{sB} offen offset:1024')
        a.vm(f'buffer_load_dwordx4 {vr(fr(si,2),4)}, v5, s[20:23], s{sA1} offen')
        a.vm(f'buffer_load_dwordx4 {vr(fr(si,6),4)}, v6, s[24:27], s{sB} offen offset:2048')
        a.vm(f'buffer_load_dwordx4 {vr(fr(si,3),4)}, v5, s[20:23], s{sA1} offen offset:256')
        a.vm(f'buffer_load_dwordx4 {vr(fr(si,7),4)}, v6, s[24:27], s{sB} offen offset:3072')
        t=a.vm(f'buffer_load_dwordx4 {vr(fr(si,8),4)}, v7, s[24:27], s{sB} offen')
        if adv:
            a.e(f's_add_u32 s{sA0}, s{sA0}, 2048'); a.e(f's_add_u32 s{sA1}, s{sA1}, 2048'); a.e(f's_add_u32 s{sB}, s{sB}, 40960')
        return t
    KVR=FB+36*NS
    a.e('s_mul_i32 s49, s3, %d'%(8*KV_HSTRIDE))
    a.e(f'v_lshlrev_b32 v12, 2, v1'); a.e(f'v_add_u32 v12, {name}_tab - {name}_pc, v12')
    def kv_round(rd):
        ms=[m for m in range(4*rd,4*rd+4) if m<14]
        for k,m in enumerate(ms):
            a.vm(f'buffer_load_dwordx4 {vr(KVR+4*k,4)}, v6, s[36:39], s49 offen offset:{(m%4)*1024}')
            t=a.vm(f'buffer_load_dword v{KVR+16+k}, v12, s[40:43], 0 offen offset:{(m%4)*256}')
        a.e('s_add_u32 s49, s49, 4096'); a.e('v_add_u32 v12, 1024, v12')
        return ms,t
    def kv_consume(ms,t):
        a.wait_vm(t)
        for k,m in enumerate(ms):
            r=KVR+4*k
            a.e(f'v_cvt_pk_bf16_f32 v{r}, v{r}, v{r+1}'); a.e(f'v_cvt_pk_bf16_f32 v{r+1}, v{r+2}, v{r+3}')
            a.e(f'v_cmp_ne_u32 vcc, -1, v{KVR+16+k}'); a.e(f'v_add_u32 v{KVR+16+k}, s48, v{KVR+16+k}')
            a.e(f's_and_saveexec_b64 s[50:51], vcc')
            a.ds(f'ds_write_b64 v{KVR+16+k}, {vr(r,2)}')
            a.e('s_mov_b64 exec, s[50:51]')
    for i in range(4): a.e(f'v_mov_b32 v{12+4+i}, 0')
    a.e('v_add_u32 v13, s48, v6')
    for i in range(19): a.ds(f'ds_write_b128 v13, v[16:19] offset:{i*1024}')
    a.e('s_mov_b32 exec_hi, 0'); a.ds(f'ds_write_b128 v13, v[16:19] offset:{19*1024}'); a.e('s_mov_b32 exec_hi, -1')
    stamp()
    kvr=kv_round(0)
    for p in range(NS): toks[p]=issue(p,p,16,17,18)
    xt=None
    for nt in range(5): xt=a.vm(f'buffer_load_dwordx2 {vr(12+2*nt if False else 224+2*nt,2)}, v8, s[28:31], 0 offen offset:{nt*32}')
    XR=224
    first=True
    a.wait_all_lg()
    rd=0
    def mfma_set(si,first):
        for nt in range(5):
            for st in range(4):
                acc=ar(16*nt+4*st,4)
                a.e(f'v_mfma_f32_16x16x32_bf16 {acc}, {vr(fr(si,4+nt),4)}, {vr(fr(si,st),4)}, {"0" if first else acc}')
    otok={}
    for p in range(NH):
        si=p%NS
        a.wait_vm(toks[p])
        if p in (0,6,12): stamp()
        mfma_set(si,p==0)
        if p+NS<NH: toks[p+NS]=issue(p+NS,si,16,17,18,last_cond=(p+NS==NH-1))
        elif p+NS-NH<5:
            k=p+NS-NH; otok[k]=(issue(100+k,si,45,46,47),si)
        if p in (1,3,5,7):
            kv_consume(*kvr); rd+=1
            if rd<4: kvr=kv_round(rd)
    stamp()
    S={k:otok[k][1] for k in range(5)}
    OB=FB+36*NS+20+10+2
    AFR=236
    a.e(f'v_add_u32 v13, s48, v6')
    a.e('v_and_b32 v14, 3, v1'); a.e('v_lshlrev_b32 v14, 6, v14'); a.e('v_lshl_add_u32 v14, v4, 4, v14'); a.e('v_add_u32 v14, s48, v14')
    a.wait_all_lg()
    a.wait_vm(otok[4][0])
    for xy in range(2):
        for k in range(3):
            t=a.ds(f'ds_read_b128 {vr(AFR+4*k,4)}, v14 offset:{ZIMG+(xy*3+k)*256}')
        a.wait_lg(t)
        for k in range(3):
            ks=k+2*xy
            for st in range(4):
                acc=ar(80+st*8+xy*4,4)
                a.e(f'v_mfma_f32_16x16x32_bf16 {acc}, {vr(AFR+4*k,4)}, {vr(fr(S[ks],st),4)}, {"0" if k==0 else acc}')
    a.nop(10)
    RD=KVR
    a.e('v_cmp_le_u32 s[52:53], 1, v4'); a.e('v_cmp_le_u32 s[54:55], 2, v4'); a.e('v_cmp_le_u32 s[56:57], 3, v4')
    for st in range(4):
        for hh in range(8):
            a.e(f'v_accvgpr_read_b32 v{KVR+hh}, a{80+st*8+hh}')
        for hh in range(8): a.e(f'v_add_f32 v{KVR+hh}, {f32(1e-6)}, v{KVR+hh}')
        for hh in range(8): a.e(f'v_rcp_f32 v{KVR+hh}, v{KVR+hh}')
        a.e('s_nop 0')
        for hh in range(8): a.e(f'v_accvgpr_write_b32 a{80+st*8+hh}, v{KVR+hh}')
    mask={1:'s[52:53]',2:'s[54:55]',3:'s[56:57]'}
    for m in range(5):
        fl=[(e2,ks) for e2 in range(2) for ks in et_ks(2*m+e2)]
        for i,(e2,ks) in enumerate(fl): t=a.ds(f'ds_read_b128 {vr(AFR+4*i,4)}, v13 offset:{FIDX[(2*m+e2,ks)]*1024}')
        a.wait_lg(t)
        seen=set()
        for i,(e2,ks) in enumerate(fl):
            for st in range(4):
                acc=ar(112+st*8+e2*4,4)
                a.e(f'v_mfma_f32_16x16x32_bf16 {acc}, {vr(AFR+4*i,4)}, {vr(fr(S[ks],st),4)}, {"0" if e2 not in seen else acc}')
            seen.add(e2)
        a.nop(10)
        BFR=KVR
        for st in range(4):
            for e2 in range(2):
                et=2*m+e2
                hs=[(4*et+q)//5 for q in range(4)]
                T=12
                a.e(f'v_accvgpr_read_b32 v16, a{80+st*8+hs[0]}')
                for q in range(1,4):
                    if hs[q]!=hs[q-1]:
                        a.e(f'v_accvgpr_read_b32 v17, a{80+st*8+hs[q]}'); a.e('s_nop 0'); a.e(f'v_cndmask_b32 v16, v16, v17, {mask[q]}')
                for i in range(4): a.e(f'v_accvgpr_read_b32 v{18+i}, a{112+st*8+e2*4+i}')
                for i in range(4): a.e(f'v_mul_f32 v{18+i}, v{18+i}, v16')
                a.e(f'v_cvt_pk_bf16_f32 v{BFR+4*st+2*e2}, v18, v19'); a.e(f'v_cvt_pk_bf16_f32 v{BFR+4*st+2*e2+1}, v20, v21')
        a.e('s_nop 1')
        for nt in range(5):
            for st in range(4):
                acc=ar(16*nt+4*st,4)
                a.e(f'v_mfma_f32_16x16x32_bf16 {acc}, {vr(fr(S[m],4+nt),4)}, {vr(BFR+4*st,4)}, {acc}')
    stamp()
    a.nop(10); a.e('s_barrier')
    for st in range(4):
        for nt in range(5):
            a.ds(f'ds_write_b128 {"v9" if st<2 else "v10"}, {ar(16*nt+4*st,4)} offset:{(st%2)*20480+nt*1024}')
    a.wait_all_lg(); a.e('s_barrier')
    R=FB
    for src in range(4):
        for nt in range(5): a.ds(f'ds_read_b128 {vr(R+20*src+4*nt,4)}, v11 offset:{src*5120+nt*1024}')
    a.wait_vm(xt); a.wait_all_lg()
    for nt in range(5):
        for i in range(4):
            r0=R+4*nt+i
            a.e(f'v_add_f32 v{r0}, v{r0}, v{r0+20}'); a.e(f'v_add_f32 v{r0+40}, v{r0+40}, v{r0+60}')
        xr=XR+2*nt
        a.e(f'v_lshlrev_b32 v{R+80}, 16, v{xr}'); a.e(f'v_and_b32 v{R+81}, 0xffff0000, v{xr}')
        a.e(f'v_lshlrev_b32 v{R+82}, 16, v{xr+1}'); a.e(f'v_and_b32 v{R+83}, 0xffff0000, v{xr+1}')
        for i in range(4):
            r0=R+4*nt+i
            a.e(f'v_add_f32 v{r0}, v{r0}, v{r0+40}'); a.e(f'v_add_f32 v{r0}, v{r0}, v{R+80+i}')
        a.e(f'v_cvt_pk_bf16_f32 v{R+84+2*nt}, v{R+4*nt}, v{R+4*nt+1}'); a.e(f'v_cvt_pk_bf16_f32 v{R+85+2*nt}, v{R+4*nt+2}, v{R+4*nt+3}')
        a.vm(f'buffer_store_dwordx2 {vr(R+84+2*nt,2)}, v8, s[32:35], 0 offen offset:{nt*32}')
    if stamps:
        a.wait_all_vm(); stamp(); a.e('s_waitcnt lgkmcnt(0)')
        a.e(f's_add_u32 s36, s8, {STAMP_OFF+0x80000:#x}'); a.e('s_addc_u32 s37, s9, 0'); a.e('s_mov_b32 s38, 0x80000'); a.e('s_mov_b32 s39, 0x20000')
        a.e('s_lshl_b32 s15, s2, 2'); a.e('s_add_u32 s15, s15, s3'); a.e('s_lshl_b32 s15, s15, 6'); a.e('v_mov_b32 v1, s15')
        for i in range(nst[0]):
            a.e(f'v_mov_b32 v2, s{64+2*i}'); a.e(f'buffer_store_dword v2, v1, s[36:39], 0 offen offset:{4*i}')
    a.label(f'{name}_end'); a.e('s_endpgm')
    a.e('.p2align 2'); a.label(f'{name}_tab')
    tab=kv_table()
    for i in range(0,len(tab),8): a.e('.long '+','.join(f'{x:#x}' for x in tab[i:i+8]))
    a.label(f'{name}_tabend')
    return a.text(), kernel_desc(name,256+144,256)
```

```python
ACT_OFF=0; ACT_SZ=64*148*1024
W2F_OFF=0xA00000; W2F_SZ=78*40*1024
KV_OFF=0xE00000; KV_HSTRIDE=1792; KV_SZ=32*KV_HSTRIDE
XN_OFF=0x1000000; XN_SZ=64*40*1024
STAMP_OFF=0x1400000; STAMP_SZ=0x100000
PQ=3840; PG=3456
W1F_OFF=0x2000000; W1F_SZ=10*336*2048
```

```python
import sys
from k0 import gen_k0, NWG
from k1v3 import gen_k1, LDS_TOTAL
from k2v2 import gen_k2
import build
def make(fn, opts=None, k2opts=None, only=None):
    b0,d0=gen_k0(); b1,d1=gen_k1(opts=opts or {}); b2,d2=gen_k2(**(k2opts or {}))
    hdr='; parallel_sum(linear_attn_block, glu) : 3 launches\n'
    hdr+=f'; @launch kernel=k0_kernel grid=({NWG},1,1) block=(256,1,1) lds=16384\n'
    hdr+=f'; @launch kernel=k1_kernel grid=(256,1,1) block=(512,1,1) lds={LDS_TOTAL}\n'
    hdr+='; @launch kernel=k2_kernel grid=(256,1,1) block=(256,1,1) lds=98304\n'
    hdr+='.amdgcn_target "amdgcn-amd-amdhsa--gfx950"\n.text\n'
    open(fn,'w').write(hdr+b0+b1+b2+'code_end_all:\n.set CODE_BYTES_ALL, code_end_all - k0_kernel - 256\n.fill 64, 4, 0xBF800000\n.section .rodata,"a"\n.p2align 6\n'+d0+'.p2align 6\n'+d1+'.p2align 6\n'+d2)
if __name__=='__main__':
    make('k.s',opts=dict(ilv=1)); build.build('k.s','k.co')
    make('ks.s',opts=dict(ilv=1),k2opts=dict(stamps=True)); build.build('ks.s','ks.co')
```

```python
from asmlib import *
from layout import *
import struct
def f32(x): return '0x%08x'%struct.unpack('<I',struct.pack('<f',x))[0]
NLN=128; NTASK=740; NRP=(NTASK+3)//4; NWG=NLN+NRP
def gen_k0(name='k0_kernel',sf='',stamps=False):
    a=Asm()
    a.e('.p2align 8'); a.e(f'.globl {name}'); a.e(f'.type {name},@function'); a.label(name)
    a.e(f's_cmp_ge_u32 s2, {NWG}'); a.e(f's_cbranch_scc1 {name}_end')
    if stamps: a.e('s_memrealtime s[70:71]')
    a.e('s_load_dwordx16 s[8:23], s[0:1], 0'); a.e('s_load_dwordx2 s[24:25], s[0:1], 72')
    pX,pQKV,pWO,pG,pU,pWD,pWS=8,10,12,16,18,20,24
    a.e('v_and_b32 v1, 63, v0'); a.e('v_lshrrev_b32 v2, 6, v0'); a.e('v_and_b32 v3, 15, v1'); a.e('v_lshrrev_b32 v4, 4, v1')
    a.e('v_readfirstlane_b32 s3, v2')
    a.e('v_lshlrev_b32 v5, 4, v1')
    a.e('s_waitcnt lgkmcnt(0)')
    def mk(srd,ptr,off,size):
        if off: a.e(f's_add_u32 s{srd}, s{ptr}, {off:#x}'); a.e(f's_addc_u32 s{srd+1}, s{ptr+1}, 0')
        else: a.e(f's_mov_b32 s{srd}, s{ptr}'); a.e(f's_mov_b32 s{srd+1}, s{ptr+1}')
        a.e(f's_mov_b32 s{srd+2}, {size:#x}'); a.e(f's_mov_b32 s{srd+3}, 0x20000')
    a.e('s_lshl_b32 s4, s2, 8'); a.e('v_add_u32 v6, s4, v0'); a.e('v_lshlrev_b32 v7, 7, v6')
    mk(28,pQKV,0,640*PQ); mk(32,pG,0,640*PG); mk(36,pU,0,640*PG)
    a.e('buffer_load_dword v60, v7, s[28:31], 0 offen'); a.e(f'v_subrev_u32 v7, {640*PQ}, v7')
    a.e('buffer_load_dword v61, v7, s[32:35], 0 offen'); a.e(f'v_subrev_u32 v7, {640*PG}, v7')
    a.e('buffer_load_dword v62, v7, s[36:39], 0 offen'); a.e(f'v_subrev_u32 v7, {640*PG}, v7')
    a.e('s_getpc_b64 s[40:41]'); a.e('s_mov_b32 s42, CODE_BYTES_ALL'); a.e('s_mov_b32 s43, 0x20000')
    a.e('buffer_load_dword v63, v7, s[40:43], 0 offen')
    a.e(f's_cmp_ge_u32 s2, {NLN}'); a.e(f's_cbranch_scc1 {name}_rp')
    mk(40,pX,0,2048*1280); mk(44,pWS,XN_OFF,XN_SZ)
    a.e('s_lshl_b32 s4, s2, 4'); a.e('v_add_u32 v7, s4, v3'); a.e('s_movk_i32 s5, 1280'); a.e('v_mul_lo_u32 v7, v7, s5'); a.e('v_lshl_add_u32 v7, v4, 4, v7')
    a.e('s_mul_i32 s5, s3, 320')
    for i in range(5): t=a.vm(f'buffer_load_dwordx4 {vr(16+4*i,4)}, v7, s[40:43], s5 offen offset:{64*i}')
    a.e('v_mov_b32 v8, 0'); a.e('v_mov_b32 v9, 0')
    a.wait_vm(t)
    for i in range(20):
        a.e(f'v_lshlrev_b32 v{40+2*i}, 16, v{16+i}'); a.e(f'v_and_b32 v{41+2*i}, 0xffff0000, v{16+i}')
        a.e(f'v_add_f32 v8, v8, v{40+2*i}'); a.e(f'v_add_f32 v8, v8, v{41+2*i}')
    for (r,t0) in ((8,10),):
        a.e(f'v_mov_b32 v10, v8'); a.e('s_nop 1'); a.e('v_permlane32_swap_b32 v8, v10'); a.e('s_nop 1'); a.e('v_add_f32 v8, v8, v10')
        a.e(f'v_mov_b32 v10, v8'); a.e('s_nop 1'); a.e('v_permlane16_swap_b32 v8, v10'); a.e('s_nop 1'); a.e('v_add_f32 v8, v8, v10')
    a.e('v_lshlrev_b32 v11, 2, v3'); a.e('s_lshl_b32 s4, s3, 6'); a.e('v_add_u32 v12, s4, v11')
    a.ds('ds_write_b32 v12, v8'); a.wait_all_lg(); a.e('s_barrier')
    for w in range(4): a.ds(f'ds_read_b32 v{80+w}, v11 offset:{64*w}')
    a.wait_all_lg()
    a.e('v_add_f32 v80, v80, v81'); a.e('v_add_f32 v82, v82, v83'); a.e('v_add_f32 v80, v80, v82'); a.e(f'v_mul_f32 v80, {f32(1/640)}, v80')
    for i in range(40):
        a.e(f'v_sub_f32 v{40+i}, v{40+i}, v80'); a.e(f'v_fma_f32 v9, v{40+i}, v{40+i}, v9')
    a.e(f'v_mov_b32 v10, v9'); a.e('s_nop 1'); a.e('v_permlane32_swap_b32 v9, v10'); a.e('s_nop 1'); a.e('v_add_f32 v9, v9, v10')
    a.e(f'v_mov_b32 v10, v9'); a.e('s_nop 1'); a.e('v_permlane16_swap_b32 v9, v10'); a.e('s_nop 1'); a.e('v_add_f32 v9, v9, v10')
    a.ds('ds_write_b32 v12, v9 offset:256'); a.wait_all_lg(); a.e('s_barrier')
    for w in range(4): a.ds(f'ds_read_b32 v{81+w}, v11 offset:{256+64*w}')
    a.wait_all_lg()
    a.e('v_add_f32 v81, v81, v82'); a.e('v_add_f32 v83, v83, v84'); a.e('v_add_f32 v81, v81, v83')
    a.e(f'v_mul_f32 v81, {f32(1/640)}, v81'); a.e(f'v_add_f32 v81, {f32(1e-5)}, v81'); a.e('v_rsq_f32 v81, v81'); a.e('s_nop 0')
    a.e('s_lshr_b32 s4, s2, 1'); a.e('s_mul_i32 s4, s4, 40'); a.e('s_and_b32 s5, s2, 1'); a.e('s_add_u32 s4, s4, s5'); a.e('s_mul_i32 s5, s3, 10'); a.e('s_add_u32 s4, s4, s5'); a.e('s_lshl_b32 s4, s4, 10')
    for i in range(5):
        for j in range(4):
            k=4*i+j
            a.e(f'v_mul_f32 v{40+2*k}, v{40+2*k}, v81'); a.e(f'v_mul_f32 v{41+2*k}, v{41+2*k}, v81')
            a.e(f'v_cvt_pk_bf16_f32 v{16+k}, v{40+2*k}, v{41+2*k}')
        a.vm(f'buffer_store_dwordx4 {vr(16+4*i,4)}, v5, s[44:47], s4 offen{sf}')
        if i<4: a.e('s_add_u32 s4, s4, 2048')
    a.e(f's_branch {name}_fin')
    a.label(f'{name}_rp')
    mk(40,pWO,0,640*1280); mk(44,pWD,0,1728*1280); mk(48,pWS,W2F_OFF,W2F_SZ); mk(52,pWS,KV_OFF,KV_SZ)
    a.e(f's_sub_u32 s4, s2, {NLN}'); a.e('s_lshl_b32 s5, s4, 8'); a.e('v_add_u32 v7, s5, v0'); a.e('v_lshlrev_b32 v7, 4, v7')
    for i in range(4): a.e(f'v_mov_b32 v{8+i}, 0')
    a.e('buffer_store_dwordx4 v[8:11], v7, s[52:55], 0 offen')
    a.e('s_lshl_b32 s4, s4, 2'); a.e('s_add_u32 s4, s4, s3')
    a.e(f's_cmp_ge_u32 s4, {NTASK}'); a.e(f's_cbranch_scc1 {name}_fin')
    mk(28,pQKV,0,640*PQ); mk(32,pG,0,640*PG); mk(36,pU,0,640*PG); mk(64,pWS,W1F_OFF,W1F_SZ)
    lw2=a.newlabel('Lw2'); lq=a.newlabel('Lq'); lgo=a.newlabel('Lgo')
    a.e('s_cmp_lt_u32 s4, 740'); a.e(f's_cbranch_scc1 {lw2}')
    a.e('s_cmp_lt_u32 s4, 1340'); a.e(f's_cbranch_scc1 {lq}')
    a.e('s_sub_u32 s4, s4, 1340'); a.e('s_cmp_ge_u32 s4, 540'); a.e('s_cselect_b32 s27, 1, 0')
    for i in range(3): a.e(f's_cselect_b32 s{56+i}, s{36+i}, s{32+i}')
    a.e('s_cselect_b32 s5, 540, 0'); a.e('s_sub_u32 s4, s4, s5')
    a.e('s_mul_i32 s5, s4, 2428'); a.e('s_lshr_b32 s5, s5, 16')
    a.e('s_mul_i32 s6, s5, 27'); a.e('s_sub_u32 s6, s4, s6')
    a.e(f's_mul_i32 s7, s5, {32*PG}'); a.e('s_lshl_b32 s26, s6, 7'); a.e('s_add_u32 s7, s7, s26'); a.e(f's_movk_i32 s26, {PG}')
    a.e('s_lshl_b32 s6, s6, 3'); a.e('s_add_u32 s6, s6, s27'); a.e('s_add_u32 s6, s6, 120'); a.e('s_movk_i32 s68, 4096')
    a.e(f's_branch {lgo}_w1')
    a.label(lq)
    a.e('s_sub_u32 s4, s4, 740')
    for i in range(3): a.e(f's_mov_b32 s{56+i}, s{28+i}')
    a.e('s_mul_i32 s5, s4, 2185'); a.e('s_lshr_b32 s5, s5, 16')
    a.e('s_mul_i32 s6, s5, 30'); a.e('s_sub_u32 s6, s4, s6')
    a.e(f's_mul_i32 s7, s5, {32*PQ}'); a.e('s_lshl_b32 s26, s6, 7'); a.e('s_add_u32 s7, s7, s26'); a.e(f's_movk_i32 s26, {PQ}')
    a.e('s_lshl_b32 s6, s6, 2'); a.e('s_movk_i32 s68, 2048')
    a.label(f'{lgo}_w1')
    a.e('s_lshr_b32 s27, s5, 1'); a.e('s_mul_i32 s27, s27, 336'); a.e('s_add_u32 s27, s27, s6'); a.e('s_lshl_b32 s27, s27, 11'); a.e('s_and_b32 s5, s5, 1'); a.e('s_lshl_b32 s5, s5, 10'); a.e('s_add_u32 s69, s27, s5')
    for i in range(2): a.e(f's_mov_b32 s{48+i}, s{64+i}')
    a.e(f's_mov_b32 s50, {W1F_SZ:#x}')
    a.e('s_movk_i32 s5, 20')
    a.e(f's_branch {lgo}')
    a.label(lw2)
    a.e('s_mul_i32 s5, s4, 205'); a.e('s_lshr_b32 s5, s5, 11'); a.e('s_mul_i32 s6, s5, 10'); a.e('s_sub_u32 s6, s4, s6')
    a.e('s_lshl_b32 s7, s5, 5'); a.e('s_sub_u32 s26, s5, 20'); a.e('s_lshl_b32 s26, s26, 5')
    a.e('s_cmp_lt_u32 s5, 20')
    for i in range(3): a.e(f's_cselect_b32 s{56+i}, s{40+i}, s{44+i}')
    a.e('s_cselect_b32 s7, s7, s26'); a.e('s_mul_i32 s7, s7, 1280'); a.e('s_lshl_b32 s26, s6, 7'); a.e('s_add_u32 s7, s7, s26')
    a.e('s_mul_i32 s69, s5, 40'); a.e('s_lshl_b32 s27, s6, 2'); a.e('s_add_u32 s69, s69, s27'); a.e('s_lshl_b32 s69, s69, 10'); a.e('s_movk_i32 s68, 1024'); a.e('s_movk_i32 s26, 1280')
    a.label(lgo)
    a.e('s_mov_b32 s59, 0x20000')
    a.e('v_lshrrev_b32 v7, 2, v1'); a.e('v_mul_lo_u32 v8, v7, s26')
    a.e('v_lshrrev_b32 v7, 3, v7'); a.e('v_lshlrev_b32 v7, 1, v7'); a.e('v_and_b32 v9, 3, v1'); a.e('v_xor_b32 v7, v7, v9'); a.e('v_lshl_add_u32 v8, v7, 4, v8')
    a.e('s_lshl_b32 s28, s26, 4')
    a.e('s_lshl_b32 s26, s3, 12')
    t=None
    for img in range(2):
        for half in range(2):
            a.e(f's_add_u32 m0, s26, {img*2048+half*1024}')
            a.e(f's_add_u32 s27, s7, {img*64}')
            if half: a.e('s_add_u32 s27, s27, s28')
            t=a.vm('buffer_load_dwordx4 v8, s[56:59], s27 offen lds')
    a.e('v_lshrrev_b32 v9, 2, v3'); a.e('v_and_b32 v10, 3, v3')
    a.e('v_lshl_add_u32 v11, v4, 3, v9'); a.e('v_lshlrev_b32 v11, 6, v11'); a.e('v_and_b32 v12, 1, v4'); a.e('v_lshl_add_u32 v11, v12, 5, v11'); a.e('v_lshl_add_u32 v11, v10, 3, v11')
    a.e('v_add_u32 v13, 256, v11')
    a.e('v_lshl_add_u32 v14, v4, 2, v9'); a.e('v_lshlrev_b32 v14, 6, v14'); a.e('v_lshrrev_b32 v12, 1, v4'); a.e('v_lshl_add_u32 v14, v12, 5, v14'); a.e('v_lshl_add_u32 v14, v10, 3, v14')
    a.e('v_add_u32 v15, 1024, v14')
    a.e('s_cmp_lt_u32 s5, 20'); a.e('s_cselect_b64 vcc, -1, 0')
    a.e('v_cndmask_b32 v11, v11, v14, vcc'); a.e('v_cndmask_b32 v13, v13, v15, vcc')
    a.e('v_add_u32 v11, s26, v11'); a.e('v_add_u32 v13, s26, v13')
    a.e('v_xor_b32 v14, 32, v11'); a.e('v_xor_b32 v15, 32, v13')
    a.wait_vm(t)
    for img in range(2):
        for hf in range(2):
            d=16+4*(2*img+hf)
            a.ds(f'ds_read_b64_tr_b16 {vr(d,2)}, v{14 if hf else 11} offset:{img*2048}')
            a.ds(f'ds_read_b64_tr_b16 {vr(d+2,2)}, v{15 if hf else 13} offset:{img*2048}')
    a.wait_all_lg()
    for i in range(4):
        a.vm(f'buffer_store_dwordx4 {vr(16+4*i,4)}, v5, s[48:51], s69 offen{sf}')
        if i<3: a.e('s_add_u32 s69, s69, s68')
    a.label(f'{name}_fin')
    if stamps:
        a.e('s_waitcnt vmcnt(0)'); a.e('s_memrealtime s[72:73]'); a.e('s_waitcnt lgkmcnt(0)')
        a.e(f's_add_u32 s52, s24, {STAMP_OFF+0xC0000:#x}'); a.e('s_addc_u32 s53, s25, 0'); a.e('s_mov_b32 s54, 0x40000'); a.e('s_mov_b32 s55, 0x20000')
        a.e('s_lshl_b32 s4, s2, 2'); a.e('s_add_u32 s4, s4, s3'); a.e('s_lshl_b32 s4, s4, 3'); a.e('v_mov_b32 v1, s4'); a.e('v_mov_b32 v2, s70'); a.e('v_mov_b32 v3, s72')
        a.e('buffer_store_dwordx2 v[2:3], v1, s[52:55], 0 offen')
    a.label(f'{name}_end'); a.e('s_endpgm')
    return a.text(), kernel_desc(name,96,96,80)
```

```python
from asmlib import *
from layout import *
import struct
def f32(x): return '0x%08x'%struct.unpack('<I',struct.pack('<f',x))[0]
LOG2E=1.4426950408889634
SLOT0=[0,36864,73728,110592]
SLOT1=[73728,122880,0,98304]
STG=24576
ONES=147456
STASH=ONES+1024
LDS_TOTAL=STASH+14336
PKP=272
PK_B=STG; V_B=STG+80*PKP
def slot(g): return SLOT0[g%4] if g<10 else SLOT1[(g-10)%4]
vT32a,vT32b,vT16a,vT16b=1,2,3,4
vX=5
vW32,vW16,vW32b,vW16b=6,7,8,9
vL16=10; vTMP=11; vM0,vM1,vM2,vM3=12,13,14,15
NR=8
RING=16
ACC=48
sW,sR,sC,sRB,sJOB=3,4,5,6,7
pXX,pQKV,pWO,pBX,pG,pU,pWD,pOUT,pDBG,pWS=8,10,12,14,16,18,20,22,24,26
srdX,srdQ,srdG,srdU,srdACT,srdKV,srdST=28,32,36,40,44,48,52
sM32,sMX,sX0,sM16=56,57,58,96
srdGU=92
sO=60
sACT,sP0,sP1=68,69,70
sCB=71
sT=76
class Group:
    def __init__(s,kind,P=0,swapped=False,wofs=0):
        s.kind=kind; s.P=P; s.swapped=swapped; s.wofs=wofs
        s.U = 2*P if kind=='gu' else 5
        if kind=='gu':
            im=[]; t=[]
            if P>=2: im+= [('G',32,0,0),('U',32,4096,0)]; t+=[(0,0),(1,0),(0,1),(1,1)]
            if P==3: im+= [('G',16,8192,64),('U',16,10240,64)]; t+=[(2,0),(3,0)]
            s.images=im; s.tiles=t
        else:
            s.images=[('Q',32,0,0),('Q',32,4096,64),('Q',16,8192,128)]
            s.tiles=[(0,0),(0,1),(1,0),(1,1),(2,0)]
def groups_of(typ,c):
    if typ=='B':
        return [Group('gu',3,wofs=0),Group('gu',3,wofs=0)] if c==0 else [Group('gu',2,wofs=12288),Group('gu',3,wofs=12288)]
    return [Group('plain',swapped=True,wofs=0),Group('plain',wofs=0)] if c==0 else [Group('plain',swapped=True,wofs=10240),Group('gu',3,wofs=10240)]
def pit(G): return PQ if G.kind=='plain' else PG

class Prog:
    def __init__(p,a,typ,c,opts):
        p.a=a; p.typ=typ; p.c=c; p.o=opts; p.origin={}
        p.groups=groups_of(typ,c); p.all=[groups_of(typ,0),groups_of(typ,1)]
        p.p0=pit(p.all[0][0])
    def addr(p,reg,absoff,base):
        o=p.origin.get(reg,0)
        if not (0<=absoff-o<=65535):
            d=(base-o)&0xffffffff
            p.a.e(f'v_add_u32 v{reg}, {d:#x}, v{reg}'); p.origin[reg]=base; o=base
        return f'v{reg}', absoff-o
    def srd(p,k): return sr({'G':srdG,'U':srdU,'Q':srdQ}[k],4)
    def patt(p,G,w): return ((vW32 if w==32 else vW16) if pit(G)==p.p0 else (vW32b if w==32 else vW16b))
    def loader_of(p,h,grp):
        m=p.o.get('dmamode','own')
        return h if m=='own' else 1
    def dma_ops(p,g,toks):
        a=p.a; grp=g//10; base=slot(g); ops=[]
        if p.o.get('nodma') and g>=3: return []
        if grp==0:
            m=p.o.get('dmamode','own')
            idx = [2*p.c,2*p.c+1] if m=='own' else ([0,1,2,3] if p.c==1 else [])
            if idx and not (p.o.get('nox') and g>=3):
                def f(idx=idx):
                    a.e(f's_add_u32 m0, s{sMX}, {base+20480:#x}'); a.e(f's_add_u32 s{sX0}, s{sX0}, {0 if (p.o.get("noadv") and g>=3) else 4096}')
                    for i in idx: toks.append(a.vm(f'buffer_load_dwordx4 v{vL16}, {sr(srdX,4)}, s{sX0} offen offset:{i*1024} lds'))
                ops.append(f)
        for h in range(2):
            if p.loader_of(h,grp)!=p.c: continue
            G=p.all[h][grp]
            for i,(k,w,lo,cb) in enumerate(G.images):
                if w==32:
                    if p.o.get('no32') and g>=3: continue
                    def f(i=i,k=k,lo=lo,G=G,h=h):
                        so=sO+4*h+i
                        a.e(f's_add_u32 m0, s{sM32}, {base+G.wofs+lo:#x}')
                        a.e(f's_add_u32 s{so}, s{so}, {0 if (p.o.get("noadv") and g>=3) else 64*pit(G)}')
                        toks.append(a.vm(f'buffer_load_dwordx4 v{p.patt(G,32)}, {p.srd(k)}, s{so} offen lds'))
                    ops.append(f)
                elif i==2:
                    if p.o.get('no16') and g>=3: continue
                    def f(G=G,h=h,lo=lo):
                        so=sO+4*h+2
                        if G.kind=='plain':
                            lb=a.newlabel('L16'); a.e(f's_cmp_lt_u32 s{sR}, 2'); a.e(f's_cbranch_scc0 {lb}')
                        a.e(f's_add_u32 m0, s{sM16+ (0 if G.kind=="gu" else 1)}, {base+G.wofs+lo:#x}')
                        a.e(f's_add_u32 s{so}, s{so}, {0 if (p.o.get("noadv") and g>=3) else 64*pit(G)}')
                        srd = sr(srdGU,4) if G.kind=='gu' else sr(srdQ,4)
                        t=a.vm(f'buffer_load_dwordx4 v{p.patt(G,16)}, {srd}, s{so} offen lds',cond=(G.kind=='plain'))
                        if G.kind=='plain': a.label(lb)
                        else: toks.append(t)
                    ops.append(f)
        return ops
    def set_soffs(p,grp):
        a=p.a
        for h in range(2):
            if p.loader_of(h,grp)!=p.c: continue
            G=p.all[h][grp]; P_=pit(G)
            a.e(f's_mul_i32 s{sT+4}, s{sR}, {16*P_}'); a.e(f's_add_u32 s{sT+4}, s{sT+4}, s{sCB+2*grp+h}'); a.e(f's_sub_u32 s{sT+4}, s{sT+4}, {64*P_}')
            for i,(k,w,lo,cb) in enumerate(G.images):
                if w==32: a.e(f's_add_u32 s{sO+4*h+i}, s{sT+4}, {cb}')
            if len(G.images)>2:
                cb=G.images[2][3]
                if G.kind=='gu': a.e(f's_lshr_b32 s{sT+4}, s{sR}, 1')
                else: a.e(f's_mov_b32 s{sT+4}, s{sR}')
                a.e(f's_mul_i32 s{sT+4}, s{sT+4}, {32*P_}'); a.e(f's_add_u32 s{sT+4}, s{sT+4}, s{sCB+2*grp+h}'); a.e(f's_add_u32 s{sO+4*h+2}, s{sT+4}, {(cb-64*P_)&0xffffffff:#x}')
    def frag_read(p,base,wofs,img,hf,T,dst):
        a=p.a; k,w,lo,cb=img; tok=None
        for rho in range(2):
            if w==32: r,o=p.addr(vT32b if hf else vT32a, base+wofs+lo+T*2048+rho*256, base)
            else: r,o=p.addr(vT16b if rho else vT16a, base+wofs+lo+T*1024, base)
            tok=a.ds(f'ds_read_b64_tr_b16 {vr(dst+2*rho,2)}, {r} offset:{o}')
        return tok

def lane_patterns(a,pitch,d32,d16):
    a.e(f's_movk_i32 s{sT}, {pitch}')
    a.e(f'v_lshrrev_b32 v0, 6, v{vL16}')
    a.e(f'v_mul_lo_u32 v{d32}, v0, s{sT}')
    a.e(f'v_lshrrev_b32 v0, 3, v0'); a.e(f'v_lshlrev_b32 v0, 5, v0')
    a.e(f'v_and_b32 v{vTMP}, 0x30, v{vL16}'); a.e(f'v_xor_b32 v0, v0, v{vTMP}'); a.e(f'v_add_u32 v{d32}, v{d32}, v0')
    a.e(f'v_lshrrev_b32 v0, 5, v{vL16}')
    a.e(f'v_lshrrev_b32 v{vTMP}, 3, v0'); a.e(f'v_and_b32 v{vTMP}, 1, v{vTMP}'); a.e(f'v_lshlrev_b32 v{vTMP}, 2, v{vTMP}'); a.e(f'v_xor_b32 v0, v0, v{vTMP}')
    a.e(f'v_mul_lo_u32 v{d16}, v0, s{sT}'); a.e(f'v_and_b32 v{vTMP}, 16, v{vL16}'); a.e(f'v_add_u32 v{d16}, v{d16}, v{vTMP}')

def gen_k1(name='k1_kernel',opts=None):
    opts=opts or {}
    a=Asm()
    a.e('.p2align 8'); a.e(f'.globl {name}'); a.e(f'.type {name},@function'); a.label(name)
    a.e('s_cmp_ge_u32 s2, 256'); a.e(f's_cbranch_scc1 {name}_end')
    a.e('s_load_dwordx16 s[8:23], s[0:1], 0'); a.e('s_load_dwordx4 s[24:27], s[0:1], 64')
    if opts.get('stamps'): a.e('s_memrealtime s[98:99]')
    if not opts.get('notouch'):
        a.e(f's_getpc_b64 s[{srdST}:{srdST+1}]'); a.e(f's_mov_b32 s{srdST+2}, CODE_BYTES_K1'); a.e(f's_mov_b32 s{srdST+3}, 0x20000')
        a.e('v_lshlrev_b32 v95, 7, v0')
        a.e(f'buffer_load_dword v94, v95, {sr(srdST,4)}, 0 offen'); a.e('v_add_u32 v95, 0x10000, v95')
        a.e(f'buffer_load_dword v93, v95, {sr(srdST,4)}, 0 offen')
    L,S_,KG,R4,C4,T0,T1=48,49,50,51,52,53,54
    a.e(f'v_and_b32 v{L}, 63, v0'); a.e(f'v_lshrrev_b32 v{T0}, 6, v0')
    a.e(f'v_and_b32 v{S_}, 15, v{L}'); a.e(f'v_lshrrev_b32 v{KG}, 4, v{L}')
    a.e(f'v_readfirstlane_b32 s{sW}, v{T0}')
    a.e(f'v_lshrrev_b32 v{R4}, 2, v{S_}'); a.e(f'v_and_b32 v{C4}, 3, v{S_}')
    a.e(f's_and_b32 s{sR}, s{sW}, 3'); a.e(f's_lshr_b32 s{sC}, s{sW}, 2')
    a.e(f's_and_b32 s{sT}, s2, 7'); a.e(f's_lshr_b32 s{sT+1}, s2, 3')
    a.e(f's_and_b32 s{sRB}, s{sT}, 1'); a.e(f's_lshl_b32 s{sRB}, s{sRB}, 3'); a.e(f's_and_b32 s{sT+2}, s{sT+1}, 7'); a.e(f's_add_u32 s{sRB}, s{sRB}, s{sT+2}')
    a.e(f's_lshr_b32 s{sJOB}, s{sT}, 1'); a.e(f's_lshl_b32 s{sJOB}, s{sJOB}, 2'); a.e(f's_lshr_b32 s{sT+2}, s{sT+1}, 3'); a.e(f's_add_u32 s{sJOB}, s{sJOB}, s{sT+2}')
    if opts.get('samejob'):
        a.e(f's_mov_b32 s{sRB}, 0'); a.e(f's_and_b32 s{sJOB}, s{sJOB}, 8')
    a.e(f'v_lshlrev_b32 v{vL16}, 4, v{L}')
    a.e(f'v_lshlrev_b32 v{T0}, 3, v{KG}'); a.e(f'v_add_u32 v{T0}, v{T0}, v{R4}')
    a.e(f'v_and_b32 v{T1}, 1, v{KG}')
    a.e(f'v_lshlrev_b32 v{vT32a}, 6, v{T0}'); a.e(f'v_lshl_add_u32 v{vT32a}, v{T1}, 5, v{vT32a}'); a.e(f'v_lshl_add_u32 v{vT32a}, v{C4}, 3, v{vT32a}')
    a.e(f'v_xor_b32 v{vT32b}, 32, v{vT32a}')
    a.e(f'v_lshl_add_u32 v{T0}, v{T1}, 2, v{T0}'); a.e(f'v_lshlrev_b32 v{vT16a}, 5, v{T0}'); a.e(f'v_lshl_add_u32 v{vT16a}, v{C4}, 3, v{vT16a}')
    a.e(f'v_xor_b32 v{vT16b}, 128, v{vT16a}')
    a.e(f's_lshl_b32 s{sMX}, s{sR}, 12'); a.e(f's_add_u32 s{sT}, s{sMX}, 20480'); a.e(f'v_add_u32 v{vX}, s{sT}, v{vL16}')
    a.e(f's_lshl_b32 s{sM32}, s{sR}, 10'); a.e(f's_lshl_b32 s{sM16+1}, s{sR}, 10')
    a.e(f's_and_b32 s{sT}, s{sR}, 1'); a.e(f's_lshl_b32 s{sT}, s{sT}, 11'); a.e(f's_lshr_b32 s{sT+1}, s{sR}, 1'); a.e(f's_lshl_b32 s{sT+1}, s{sT+1}, 10'); a.e(f's_add_u32 s{sM16}, s{sT}, s{sT+1}')
    a.e(f's_lshl_b32 s{sT}, s{sRB}, 2'); a.e(f's_add_u32 s{sT}, s{sT}, s{sR}'); a.e(f's_mul_i32 s{sX0}, s{sT}, {40*1024}'); a.e(f's_sub_u32 s{sX0}, s{sX0}, 4096'); a.e(f's_mul_i32 s{sACT}, s{sT}, {148*1024}')
    for i in range(4): a.e(f'v_mov_b32 v{60+i}, 0x3f803f80')
    a.e(f'v_lshlrev_b32 v{T0}, 4, v0'); a.e(f'v_add_u32 v{T0}, {ONES}, v{T0}')
    a.e(f'v_cmp_gt_u32 vcc, 16, v0'); a.e(f's_and_saveexec_b64 s[{sT}:{sT+1}], vcc')
    lz=a.newlabel('Lz'); a.e(f's_cbranch_execz {lz}')
    a.e(f'ds_write_b128 v{T0}, v[60:63]')
    a.label(lz); a.e(f's_mov_b64 exec, -1')
    a.e('s_waitcnt lgkmcnt(0)')
    def mk(srd,ptr,off,size):
        if off: a.e(f's_add_u32 s{srd}, s{ptr}, {off:#x}'); a.e(f's_addc_u32 s{srd+1}, s{ptr+1}, 0')
        else: a.e(f's_mov_b32 s{srd}, s{ptr}'); a.e(f's_mov_b32 s{srd+1}, s{ptr+1}')
        a.e(f's_mov_b32 s{srd+2}, {size:#x}'); a.e(f's_mov_b32 s{srd+3}, 0x20000')
    mk(srdX,pWS,XN_OFF,XN_SZ); mk(srdQ,pQKV,0,640*PQ); mk(srdG,pG,0,640*PG); mk(srdU,pU,0,640*PG)
    mk(srdACT,pWS,ACT_OFF,ACT_SZ); mk(srdKV,pWS,KV_OFF,KV_SZ); mk(srdST,pWS,STAMP_OFF,STAMP_SZ)
    a.e(f's_bitcmp1_b32 s{sR}, 0')
    for i in range(2): a.e(f's_cselect_b32 s{srdGU+i}, s{pU+i}, s{pG+i}')
    a.e(f's_mov_b32 s{srdGU+2}, {640*PG:#x}'); a.e(f's_mov_b32 s{srdGU+3}, 0x20000')
    if opts.get('samecode'): a.e(f's_mov_b32 s{sC}, 0')
    a.e(f's_cmp_lt_u32 s{sJOB}, 8'); a.e(f's_cbranch_scc1 {name}_A')
    a.e(f's_cmp_eq_u32 s{sC}, 0'); a.e(f's_cbranch_scc0 {name}_B1'); a.e(f's_branch {name}_B0')
    a.label(f'{name}_A'); a.e(f's_cmp_eq_u32 s{sC}, 0'); a.e(f's_cbranch_scc0 {name}_A1'); a.e(f's_branch {name}_A0')
    for typ,c in (('B',0),('B',1),('A',0),('A',1)):
        a.label(f'{name}_{typ}{c}')
        a.lg_issued=a.lg_done=0; a.vm_issued=a.vm_done=0
        program(a,typ,c,opts)
        a.e(f's_branch {name}_end')
    a.label(f'{name}_end'); a.e('s_endpgm')
    a.e(f'.set CODE_BYTES_K1, {name}_end - {name}')
    return a.text(), kernel_desc(name,256,96)

def program(a,typ,c,opts):
    p=Prog(a,typ,c,opts); G0,G1=p.groups
    nst=[0]
    def stamp():
        if opts.get('stamps'):
            a.e(f's_{"memtime" if opts.get("cyc") else "memrealtime"} s[{sT+12}:{sT+13}]'); a.e('s_waitcnt lgkmcnt(0)'); a.lg_done=a.lg_issued
            a.e(f'v_mov_b32 v{vTMP}, s{sT+12}'); a.e(f's_lshl_b32 s{sT+11}, s2, 3'); a.e(f's_add_u32 s{sT+11}, s{sT+11}, s{sW}'); a.e(f's_lshl_b32 s{sT+11}, s{sT+11}, 7')
            a.e(f'v_mov_b32 v0, s{sT+11}')
            a.vm(f'buffer_store_dword v{vTMP}, v0, {sr(srdST,4)}, 0 offen offset:{4*nst[0]}'); nst[0]+=1
    def barrier(): a.e('s_barrier')
    lane_patterns(a,p.p0,vW32,vW16)
    if typ=='A': lane_patterns(a,PG,vW32b,vW16b)
    if typ=='B':
        a.e(f's_sub_u32 s{sT}, s{sJOB}, 8'); a.e(f's_mul_i32 s{sT}, s{sT}, 21'); a.e(f's_lshr_b32 s{sT}, s{sT}, 1'); a.e(f's_add_u32 s{sT}, s{sT}, 24')
        a.e(f's_add_u32 s{sP0}, s{sT}, {0 if c==0 else 3}'); a.e(f's_add_u32 s{sP1}, s{sT}, {5 if c==0 else 8}')
        for i,o in enumerate((0,3,5,8)): a.e(f's_add_u32 s{sCB+i}, s{sT}, {o}'); a.e(f's_lshl_b32 s{sCB+i}, s{sCB+i}, 5')
    else:
        a.e(f's_mul_i32 s{sT}, s{sJOB}, 160'); a.e(f's_mul_i32 s{sP1}, s{sJOB}, 3')
        a.e(f's_add_u32 s{sCB}, s{sT}, 1280'); a.e(f's_add_u32 s{sCB+1}, s{sT}, 2560'); a.e(f's_mov_b32 s{sCB+2}, s{sT}'); a.e(f's_lshl_b32 s{sCB+3}, s{sP1}, 5')
    p.set_soffs(0)
    if opts.get('sprio') and c==1: a.e('s_setprio 1')
    stamp()
    if opts.get('stamps'):
        a.e(f'v_mov_b32 v{vTMP}, s98'); a.vm(f'buffer_store_dword v{vTMP}, v0, {sr(srdST,4)}, 0 offen offset:124')
    dt={}
    for g in range(3):
        dt[g]=[]
        for f in p.dma_ops(g,dt[g]): f()
    a.wait_all_lg()
    xtok={}
    def x_ops(g):
        base=slot(g); ops=[]
        for T in range(2):
            for sg in range(2):
                def f(T=T,sg=sg):
                    r,o=p.addr(vX, base+T*2048+sg*1024, base)
                    xtok[(2*g+T,sg)]=a.ds(f'ds_read_b128 {ar(((2*g+T)*2+sg)*4,4)}, {r} offset:{o}')
                ops.append(f)
        return ops
    a.wait_vm(dt[0][-1] if dt[0] else None); barrier()
    stamp()
    for f in x_ops(0): f()
    extra={}
    def add_extra(g,f): extra.setdefault(g,[]).append(f)
    ctx=dict(p=p,a=a,typ=typ,c=c,opts=opts,add_extra=add_extra,barrier=barrier,stamp=stamp)
    if typ=='A': add_extra(18,lambda: kv_atomics(ctx))
    pend=[]
    def make_slots(g,nsl):
        R=[[] for _ in range(nsl)]; B=[[] for _ in range(nsl)]
        if g+1<10:
            for i,f in enumerate(x_ops(g+1)): R[i//2].append(f)
        d=[]
        if g+3<20:
            dt[g+3]=[]
            if g+3==10: d.append(lambda: p.set_soffs(1))
            d+=p.dma_ops(g+3,dt[g+3])
        for i,f in enumerate(d): B[0 if opts.get('burst') else (nsl-1-i*2 if opts.get('late') else (i*nsl)//max(1,len(d)))].append(f)
        ex=extra.get(g,[])
        for i,f in enumerate(ex): B[min(nsl-1,1+(i*(nsl-1))//max(1,len(ex)))].append(f)
        return list(zip(R,B))
    DIST=opts.get('dist',NR-1)
    for grp in range(2):
        G=p.groups[grp]; U=G.U; ftok={}
        def rd_frag(n):
            gl,rem=divmod(n,2*U); T,t=divmod(rem,U); im,hf=G.tiles[t]
            ftok[n]=p.frag_read(slot(grp*10+gl),G.wofs,G.images[im],hf,T,RING+4*(n%NR))
        N=20*U; st=dict(nxt=0)
        def prefetch(ok,n):
            while st['nxt']<min(N,n+DIST+1) and (st['nxt']//(2*U))<=ok:
                rd_frag(st['nxt']); st['nxt']+=1
        stage_ok=0
        if opts.get('rep') and grp==1:
            a.e(f's_mov_b32 s{sT+15}, 0'); a.label(f'Lrep_{typ}{c}'); a.wait_all_lg(); a.wait_all_vm()
            saved_origin=dict(p.origin); saved_pend=list(pend)
        prefetch(0,-1)
        for n in range(N):
            gl,rem=divmod(n,2*U); T,t=divmod(rem,U); g=grp*10+gl
            if rem==0 and gl in (0,2,4,6,8) and not opts.get('bstamp'): stamp()
            cur = pend.pop(0) if pend else ([],[])
            prefetch(stage_ok,n-1)
            if opts.get('w2') and n%2==0 and (n+1) in ftok and rem!=2*U-1: a.wait_lg(ftok[n+1])
            a.wait_lg(ftok[n])
            mf=[]
            for sg in range(2):
                if grp==0: a.wait_lg(xtok[(2*gl+T,sg)])
                acc=vr(ACC+(2*t+sg)*4,4); W=vr(RING+4*(n%NR),4); X=ar(((2*gl+T)*2+sg)*4,4)
                C='0' if (gl==0 and T==0) else acc
                if G.swapped: mf.append(f'v_mfma_f32_16x16x32_bf16 {acc}, {X}, {W}, {C}')
                else: mf.append(f'v_mfma_f32_16x16x32_bf16 {acc}, {W}, {X}, {C}')
            if opts.get('ilv'):
                mark=len(a.lines)
                for f in cur[0]: f()
                prefetch(stage_ok,n)
                for f in cur[1]: f()
                body=a.lines[mark:]; del a.lines[mark:]
                h=(len(body)+1)//2
                while 0<h<len(body) and not (body[h].startswith('ds_read') or (body[h].startswith('s_add_u32 m0') and not body[h-1].startswith('s_cbranch'))): h+=1
                nx = N>n+1 and DIST>=2
                a.e(mf[0])
                if opts.get('prio'): a.e('s_setprio 1')
                a.lines+=body[:h]; a.e(mf[1])
                if opts.get('prio'): a.e('s_setprio 0')
                a.lines+=body[h:]
            else:
                for m in mf: a.e(m)
                for f in cur[0]: f()
                prefetch(stage_ok,n)
                for f in cur[1]: f()
            if rem==U-1:
                assert not pend, (g,len(pend))
                if g+1<20:
                    if opts.get('bstamp') and g in (13,14,15): stamp()
                    if not opts.get('nowait'): a.wait_vm(dt[g+1][-1] if dt[g+1] else None)
                    if opts.get('bstamp') and g in (13,14,15): stamp()
                    barrier(); stage_ok=gl+1
                    if opts.get('bstamp') and g in (13,14,15): stamp()
                    U2=p.groups[(g+1)//10].U
                    pend=make_slots(g,U+U2)
        stamp()
        if opts.get('rep') and grp==1:
            for reg,o in saved_origin.items():
                cur=p.origin.get(reg,0)
                if cur!=o: a.e(f'v_add_u32 v{reg}, {(o-cur)&0xffffffff:#x}, v{reg}'); p.origin[reg]=o
            for reg in list(p.origin):
                if reg not in saved_origin and p.origin[reg]!=0:
                    a.e(f'v_add_u32 v{reg}, {(0-p.origin[reg])&0xffffffff:#x}, v{reg}'); p.origin[reg]=0
            a.wait_all_lg(); a.wait_all_vm(); a.e('s_barrier')
            a.e(f's_add_u32 s{sT+15}, s{sT+15}, 1'); a.e(f's_cmp_lt_u32 s{sT+15}, 2'); a.e(f's_cbranch_scc1 Lrep_{typ}{c}')
        epilogue(ctx,grp)
        stamp()
    assert not pend
    stamp()

def phi4(a,r0):
    T=RING
    for i in range(4): a.e(f'v_mul_f32 v{T+i}, {f32(LOG2E)}, v{r0+i}')
    for i in range(4): a.e(f'v_min_f32 v{T+i}, 0, v{T+i}')
    for i in range(4): a.e(f'v_exp_f32 v{T+i}, v{T+i}')
    for i in range(4): a.e(f'v_add_f32 v{r0+i}, {f32(1e-6)}, v{r0+i}')
    for i in range(4): a.e(f'v_max_f32 v{r0+i}, {f32(1e-6)}, v{r0+i}')
    for i in range(4): a.e(f'v_add_f32 v{r0+i}, v{r0+i}, v{T+i}')

def store_tile(a,rA,rB,dst4,soff,off):
    a.e(f'v_cvt_pk_bf16_f32 v{dst4}, v{rA}, v{rA+1}'); a.e(f'v_cvt_pk_bf16_f32 v{dst4+1}, v{rA+2}, v{rA+3}')
    a.e(f'v_cvt_pk_bf16_f32 v{dst4+2}, v{rB}, v{rB+1}'); a.e(f'v_cvt_pk_bf16_f32 v{dst4+3}, v{rB+2}, v{rB+3}')
    a.e('s_nop 1')
    a.e(f'v_permlane16_swap_b32 v{dst4}, v{dst4+2}'); a.e(f'v_permlane16_swap_b32 v{dst4+1}, v{dst4+3}')
    a.e('s_nop 0')
    a.vm(f'buffer_store_dwordx4 {vr(dst4,4)}, v{vL16}, {sr(srdACT,4)}, s{soff} offen offset:{off}')

def epilogue(ctx,grp):
    a=ctx['a']; p=ctx['p']; G=p.groups[grp]; c=ctx['c']
    a.nop(6)
    if G.kind=='gu':
        sP=(sP0,sP1)[grp]
        a.e(f's_lshl_b32 s{sT}, s{sP}, 10'); a.e(f's_add_u32 s{sT}, s{sT}, s{sACT}'); a.e(f's_add_u32 s{sT}, s{sT}, {40*1024}')
        for j in range(G.P):
            for sg in range(2):
                g0=ACC+(4*j+sg)*4; u0=ACC+(4*j+2+sg)*4
                for i in range(4): a.e(f'v_mul_f32 v{g0+i}, {f32(-LOG2E)}, v{g0+i}')
                for i in range(4): a.e(f'v_exp_f32 v{g0+i}, v{g0+i}')
                a.e('s_nop 0')
                for i in range(4): a.e(f'v_add_f32 v{g0+i}, 1.0, v{g0+i}')
                for i in range(4): a.e(f'v_rcp_f32 v{g0+i}, v{g0+i}')
                a.e('s_nop 0')
                for i in range(4): a.e(f'v_mul_f32 v{u0+i}, v{u0+i}, v{g0+i}')
            store_tile(a,ACC+(4*j+2)*4,ACC+(4*j+3)*4,RING+4+4*(j%2),sT,j*1024)
    elif not G.swapped:
        a.e(f's_mul_i32 s{sT}, s{sJOB}, {5*1024}'); a.e(f's_add_u32 s{sT}, s{sT}, s{sACT}'); a.e(f's_add_u32 s{sT+1}, s{sT}, 4096')
        for t in range(5):
            for sg in range(2): phi4(a,ACC+(2*t+sg)*4)
            store_tile(a,ACC+(2*t)*4,ACC+(2*t+1)*4,RING+4+4*(t%2),sT if t<4 else sT+1,(t%4)*1024)
    else:
        ctx['barrier']()
        base = PK_B if c==0 else V_B
        a.e(f'v_bfe_u32 v{vM0}, v{vL16}, 4, 4'); a.e(f's_movk_i32 s{sT}, {PKP}'); a.e(f'v_mul_lo_u32 v{vM0}, v{vM0}, s{sT}')
        a.e(f'v_lshrrev_b32 v{vM1}, 8, v{vL16}'); a.e(f'v_lshl_add_u32 v{vM0}, v{vM1}, 3, v{vM0}')
        a.e(f's_lshl_b32 s{sT}, s{sR}, 6'); a.e(f's_add_u32 s{sT}, s{sT}, {base}'); a.e(f'v_add_u32 v{vM0}, s{sT}, v{vM0}')
        for t in range(5):
            for sg in range(2):
                r0=ACC+(2*t+sg)*4
                if c==0: phi4(a,r0)
                d=RING+4+2*((2*t+sg)%4)
                a.e(f'v_cvt_pk_bf16_f32 v{d}, v{r0}, v{r0+1}'); a.e(f'v_cvt_pk_bf16_f32 v{d+1}, v{r0+2}, v{r0+3}')
                a.ds(f'ds_write_b64 v{vM0}, {vr(d,2)} offset:{16*t*PKP+32*sg}')
        a.wait_all_lg(); ctx['barrier']()
        kv_part(a,c)

def kv_part(a,c):
        a.e(f'v_bfe_u32 v{vM1}, v{vL16}, 4, 4')
        a.e(f'v_lshrrev_b32 v{vM2}, 8, v{vL16}'); a.e(f'v_lshlrev_b32 v{vM2}, 4, v{vM2}')
        a.e(f's_mul_i32 s{sT}, s{sR}, {20*PKP}'); a.e(f's_movk_i32 s{sT+1}, {PKP}')
        a.e(f'v_mul_lo_u32 v{vM0}, v{vM1}, s{sT+1}'); a.e(f'v_add_u32 v{vM0}, s{sT}, v{vM0}'); a.e(f'v_add_u32 v{vM0}, v{vM0}, v{vM2}')
        a.e(f'v_add_u32 v{vM3}, {PK_B}, v{vM0}')
        a.e(f'v_add_u32 v{vM0}, {V_B+16*c*PKP}, v{vM0}')
        if c==1:
            a.e(f'v_add_u32 v{vM2}, {ONES}, v{vM2}'); a.e(f'v_cmp_lt_u32 vcc, 3, v{vM1}'); a.e('s_nop 1'); a.e(f'v_cndmask_b32 v{vM0}, v{vM0}, v{vM2}, vcc')
        AF=RING; BF=RING+16
        for ks in range(4): a.ds(f'ds_read_b128 {vr(AF+4*ks,4)}, v{vM0} offset:{64*ks}')
        D=ACC+32; tk={}
        for dt_ in range(2):
            for ks in range(4): tk[(dt_,ks)]=a.ds(f'ds_read_b128 {vr(BF+4*ks if dt_==0 else ACC+16+4*ks,4)}, v{vM3} offset:{dt_*16*PKP+64*ks}')
        for dt_ in range(2):
            for ks in range(4):
                a.wait_lg(tk[(dt_,ks)])
                B=vr(BF+4*ks if dt_==0 else ACC+16+4*ks,4)
                a.e(f'v_mfma_f32_16x16x32_bf16 {vr(D+4*dt_,4)}, {vr(AF+4*ks,4)}, {B}, {"0" if ks==0 else vr(D+4*dt_,4)}')
        a.e(f's_lshl_b32 s{sT}, s{sW}, 11'); a.e(f's_add_u32 s{sT}, s{sT}, {STASH}'); a.e(f's_cmp_eq_u32 s{sW}, 7'); a.e(f's_cselect_b32 s{sT}, 68096, s{sT}'); a.e(f'v_add_u32 v{vM0}, s{sT}, v{vL16}')
        a.nop(6)
        for dt_ in range(2): a.ds(f'ds_write_b128 v{vM0}, {vr(D+4*dt_,4)} offset:{dt_*1024}')
        a.wait_all_lg()
def kv_atomics(ctx):
    a=ctx['a']; c=ctx['c']
    D=6
    a.e(f's_lshl_b32 s{sT}, s{sW}, 11'); a.e(f's_add_u32 s{sT}, s{sT}, {STASH}'); a.e(f's_cmp_eq_u32 s{sW}, 7'); a.e(f's_cselect_b32 s{sT}, 68096, s{sT}'); a.e(f'v_add_u32 v{vM0}, s{sT}, v{vL16}')
    a.e(f'v_bfe_u32 v{vM1}, v{vL16}, 4, 4'); a.e(f'v_lshrrev_b32 v{vM2}, 8, v{vL16}')
    a.e(f'v_mul_u32_u24 v{vM3}, 320, v{vM2}'); a.e(f'v_lshl_add_u32 v{vM3}, v{vM1}, 2, v{vM3}')
    a.e(f's_lshl_b32 s{sT}, s{sJOB}, 2'); a.e(f's_add_u32 s{sT}, s{sT}, s{sR}'); a.e(f's_mul_i32 s{sT}, s{sT}, {KV_HSTRIDE}'); a.e(f's_add_u32 s{sT}, s{sT}, {16*c*80}')
    a.e(f'v_mov_b32 v{vTMP}, 0x7f000000')
    for dt_ in range(2):
        t=a.ds(f'ds_read_b128 v[{D}:{D+3}], v{vM0} offset:{dt_*1024}')
        for cls in ((None,) if c==0 else (1,0)):
            a.e(f'v_mov_b32 v0, v{vM3}')
            if dt_==1: a.e(f'v_cmp_gt_u32 vcc, 4, v{vM1}'); a.e('s_nop 1'); a.e(f'v_cndmask_b32 v0, v{vTMP}, v0, vcc')
            if cls is not None: a.e(f'v_cmp_ge_u32 vcc, {cls}, v{vM2}'); a.e('s_nop 1'); a.e(f'v_cndmask_b32 v0, v{vTMP}, v0, vcc')
            a.wait_lg(t)
            ii = range(4) if c==0 else ([0] if cls==1 else [1,2,3])
            for i in ii: a.vm(f'buffer_atomic_add_f32 v{D+i}, v0, {sr(srdKV,4)}, s{sT} offen offset:{i*80+dt_*64}')
        a.e('s_nop 1')
```

```python
from asmlib import *
from layout import *
from k2v2 import et_ks,FRAGS,FIDX,IMG_SZ,ZIMG,kv_table,f32
OFR=4*IMG_SZ
NPO=20
def gen_k2(name='k2_kernel', NS=4, stamps=False, rot=True):
    a=Asm(); nst=[0]
    def stamp():
        if stamps: a.e(f's_memrealtime s[{64+2*nst[0]}:{65+2*nst[0]}]'); nst[0]+=1
    a.e(f'.p2align 8'); a.e(f'.globl {name}'); a.e(f'.type {name},@function'); a.label(name)
    a.e('s_cmp_ge_u32 s2, 256'); a.e(f's_cbranch_scc1 {name}_end')
    stamp()
    a.e('s_load_dwordx2 s[4:5], s[0:1], 0'); a.e('s_load_dwordx2 s[6:7], s[0:1], 56'); a.e('s_load_dwordx2 s[8:9], s[0:1], 72')
    a.e('s_getpc_b64 s[40:41]'); a.label(f'{name}_pc')
    a.e(f's_mov_b32 s42, {name}_tabend - {name}_pc'); a.e('s_mov_b32 s43, 0x20000')
    a.e('v_lshlrev_b32 v1, 7, v0'); a.e('buffer_load_dword v23, v1, s[40:43], 0 offen')
    a.e('v_and_b32 v1, 63, v0'); a.e('v_lshrrev_b32 v2, 6, v0'); a.e('v_and_b32 v3, 15, v1'); a.e('v_lshrrev_b32 v4, 4, v1')
    a.e('v_readfirstlane_b32 s3, v2')
    a.e('v_lshrrev_b32 v5, 1, v4'); a.e('v_lshlrev_b32 v5, 10, v5'); a.e('v_and_b32 v6, 1, v4'); a.e('v_lshlrev_b32 v6, 9, v6'); a.e('v_lshlrev_b32 v7, 4, v3')
    a.e('v_add3_u32 v5, v5, v6, v7'); a.e('v_lshlrev_b32 v6, 4, v1'); a.e('v_add_u32 v7, 0x1000, v6')
    a.e('s_and_b32 s10, s2, 7'); a.e('s_lshr_b32 s11, s2, 3')
    a.e('s_lshr_b32 s12, s10, 1'); a.e('s_lshl_b32 s12, s12, 3'); a.e('s_and_b32 s13, s11, 7'); a.e('s_add_u32 s12, s12, s13')
    a.e('s_and_b32 s13, s10, 1'); a.e('s_lshl_b32 s13, s13, 2'); a.e('s_lshr_b32 s14, s11, 3'); a.e('s_add_u32 s13, s13, s14')
    a.e('s_and_b32 s44, s3, 3')
    a.e('s_mul_i32 s14, s44, 13'); a.e('s_min_u32 s15, s44, 2'); a.e('s_add_u32 s14, s14, s15')
    a.e('s_cmp_lt_u32 s44, 2'); a.e('s_cselect_b32 s45, 14, 13')
    a.e('s_add_u32 s46, s12, s13'); a.e('s_and_b32 s46, s46, 3'); a.e(f's_mul_i32 s46, s46, {3 if rot else 0}')
    sAH,sAO,sBH,sBO=16,48,20,21
    a.e('s_mul_i32 s22, s12, 296'); a.e('s_lshl_b32 s22, s22, 10')
    for j in range(4):
        a.e(f's_add_u32 s15, s44, {j}'); a.e('s_and_b32 s15, s15, 3'); a.e('s_lshr_b32 s23, s15, 1'); a.e(f's_mul_i32 s23, s23, {148*1024}'); a.e('s_and_b32 s15, s15, 1'); a.e('s_lshl_b32 s15, s15, 8')
        a.e('s_add_u32 s23, s23, s15'); a.e('s_add_u32 s23, s23, s22')
        a.e('s_lshl_b32 s15, s14, 11'); a.e(f's_add_u32 s{sAH+j}, s23, s15'); a.e(f's_add_u32 s{sAH+j}, s{sAH+j}, {40*1024}')
        a.e('s_mul_i32 s15, s44, 10240'); a.e(f's_add_u32 s{sAO+j}, s23, s15')
    a.e(f's_add_u32 s{sBH}, s14, {NPO}'); a.e(f's_mul_i32 s{sBH}, s{sBH}, 40'); a.e('s_mul_i32 s15, s13, 5'); a.e(f's_add_u32 s{sBH}, s{sBH}, s15'); a.e(f's_lshl_b32 s{sBH}, s{sBH}, 10')
    a.e(f's_mul_i32 s{sBO}, s44, 200'); a.e(f's_add_u32 s{sBO}, s{sBO}, s15'); a.e(f's_lshl_b32 s{sBO}, s{sBO}, 10')
    a.e('s_lshl_b32 s15, s12, 6'); a.e('s_lshl_b32 s22, s44, 4'); a.e('s_add_u32 s15, s15, s22')
    a.e('v_add_u32 v8, s15, v3'); a.e('s_movk_i32 s15, 1280'); a.e('v_mul_lo_u32 v8, v8, s15')
    a.e('s_mul_i32 s15, s13, 160'); a.e('v_lshlrev_b32 v9, 3, v4'); a.e('v_add3_u32 v8, v8, v9, s15')
    a.e(f's_mul_i32 s52, s44, {IMG_SZ}')
    a.e(f's_mul_i32 s15, s44, 20480'); a.e(f's_add_u32 s15, s15, {OFR}'); a.e('v_add_u32 v20, s15, v6')
    a.e('s_waitcnt lgkmcnt(0)')
    def mk(srd,p,off,size):
        if off: a.e(f's_add_u32 s{srd}, s{p}, {off:#x}'); a.e(f's_addc_u32 s{srd+1}, s{p+1}, 0')
        else: a.e(f's_mov_b32 s{srd}, s{p}'); a.e(f's_mov_b32 s{srd+1}, s{p+1}')
        a.e(f's_mov_b32 s{srd+2}, {size:#x}'); a.e(f's_mov_b32 s{srd+3}, 0x20000')
    mk(24,8,ACT_OFF,ACT_SZ); mk(28,8,W2F_OFF,W2F_SZ); mk(32,4,0,2048*1280); mk(36,6,0,2048*1280); mk(56,8,KV_OFF,KV_SZ)
    ACTs,W2s,Xs,OUTs,KVs='s[24:27]','s[28:31]','s[32:35]','s[36:39]','s[56:59]'
    FB=24
    def fr(si,i): return FB+36*si+4*i
    a.e('s_cmp_lt_u32 s3, 4'); a.e(f's_cbranch_scc0 {name}_H')
    NH=14; toks={}
    a.e('s_mov_b32 s47, s46')
    def issue_h(p):
        si=p%NS
        a.e('s_lshl_b32 s22, s47, 11'); a.e('s_mul_i32 s23, s47, 40960')
        if p==NH-1:
            a.e('s_cmp_lt_u32 s44, 2'); a.e('s_cselect_b32 s22, s22, 0x7f000000'); a.e('s_cselect_b32 s23, s23, 0x7f000000')
        for j in range(4): a.e(f's_add_u32 s{60+j}, s{sAH+j}, s22') if False else None
        a.e(f'v_add_u32 v21, s22, v5'); a.e(f'v_add_u32 v22, s23, v6'); a.e(f'v_add_u32 v19, 0x1000, v22')
        for k,i in [('A',0),('B',0),('A',1),('B',1),('A',2),('B',2),('A',3),('B',3),('B',4)]:
            if k=='A': t=a.vm(f'buffer_load_dwordx4 {vr(fr(si,i),4)}, v21, {ACTs}, s{sAH+i} offen')
            else: t=a.vm(f'buffer_load_dwordx4 {vr(fr(si,4+i),4)}, v{19 if i==4 else 22}, {W2s}, s{sBH} offen' + (f' offset:{i*1024}' if 0<i<4 else ''))
        toks[p]=t
        a.e('s_add_u32 s47, s47, 1'); a.e('s_cmp_ge_u32 s47, s45'); a.e('s_cselect_b32 s47, 0, s47')
    def issue_o(m):
        si=(NH+m)%NS
        for i in range(5): t=a.vm(f'buffer_load_dwordx4 {vr(fr(si,4+i),4)}, v{7 if i==4 else 6}, {W2s}, s{sBO} offen' + (f' offset:{i*1024}' if 0<i<4 else ''))
        toks[NH+m]=t
        a.e(f's_add_u32 s{sBO}, s{sBO}, 40960')
    def issue(p):
        if p<NH: issue_h(p)
        elif p<NH+5: issue_o(p-NH)
    for p in range(NS): issue(p)
    XR=168
    for nt in range(4): xt=None
    stamp()
    for p in range(NH+5):
        si=p%NS
        if p==NH: a.e('s_barrier')
        if p>=NH:
            for j in range(4): lt=a.ds(f'ds_read_b128 {vr(fr(si,j),4)}, v20 offset:{((p-NH)*4+j)*1024}')
        a.wait_vm(toks[p])
        if p>=NH: a.wait_lg(lt)
        if p in (0,6,12): stamp()
        for nt in range(5):
            for j in range(4):
                acc=ar(16*nt+4*j,4)
                a.e(f'v_mfma_f32_16x16x32_bf16 {acc}, {vr(fr(si,4+nt),4)}, {vr(fr(si,j),4)}, {"0" if p==0 else acc}')
        issue(p+NS)
    stamp()
    xt=None
    for nt in range(5): xt=a.vm(f'buffer_load_dwordx2 {vr(160+2*nt,2)}, v8, {Xs}, 0 offen offset:{nt*32}')
    a.nop(6); a.e('s_barrier')
    R=FB
    for j in range(1,4):
        a.e(f's_add_u32 s15, s44, {j}'); a.e('s_and_b32 s15, s15, 3'); a.e('s_mul_i32 s15, s15, 15360'); a.e(f's_add_u32 s15, s15, {(j-1)*5120}'); a.e(f'v_add_u32 v{9+j}, s15, v6')
        for nt in range(5): a.ds(f'ds_write_b128 v{9+j}, {ar(16*nt+4*j,4)} offset:{nt*1024}')
    for nt in range(5):
        for i in range(4): a.e(f'v_accvgpr_read_b32 v{R+60+4*nt+i}, a{16*nt+i}')
    a.e('s_mul_i32 s15, s44, 15360'); a.e('v_add_u32 v13, s15, v6')
    a.wait_all_lg(); a.e('s_barrier')
    for src in range(3):
        for nt in range(5): a.ds(f'ds_read_b128 {vr(R+20*src+4*nt,4)}, v13 offset:{src*5120+nt*1024}')
    a.wait_vm(xt)
    X=R+80
    for nt in range(5):
        xr=160+2*nt
        a.e(f'v_lshlrev_b32 v{X}, 16, v{xr}'); a.e(f'v_and_b32 v{X+1}, 0xffff0000, v{xr}'); a.e(f'v_lshlrev_b32 v{X+2}, 16, v{xr+1}'); a.e(f'v_and_b32 v{X+3}, 0xffff0000, v{xr+1}')
        for i in range(4): a.e(f'v_add_f32 v{R+60+4*nt+i}, v{R+60+4*nt+i}, v{X+i}')
    a.wait_all_lg()
    for nt in range(5):
        for i in range(4):
            r0=R+4*nt+i
            a.e(f'v_add_f32 v{r0}, v{r0}, v{r0+20}'); a.e(f'v_add_f32 v{r0+40}, v{r0+40}, v{r0+60}')
        for i in range(4): a.e(f'v_add_f32 v{R+4*nt+i}, v{R+4*nt+i}, v{R+4*nt+i+40}')
        a.e(f'v_cvt_pk_bf16_f32 v{X+4+2*nt}, v{R+4*nt}, v{R+4*nt+1}'); a.e(f'v_cvt_pk_bf16_f32 v{X+5+2*nt}, v{R+4*nt+2}, v{R+4*nt+3}')
        a.vm(f'buffer_store_dwordx2 {vr(X+4+2*nt,2)}, v8, {OUTs}, 0 offen offset:{nt*32}')
    def fin_stamps():
        if stamps:
            a.wait_all_vm(); stamp(); a.e('s_waitcnt lgkmcnt(0)')
            a.e(f's_add_u32 s36, s8, {STAMP_OFF+0x80000:#x}'); a.e('s_addc_u32 s37, s9, 0'); a.e('s_mov_b32 s38, 0x40000'); a.e('s_mov_b32 s39, 0x20000')
            a.e('s_lshl_b32 s15, s2, 3'); a.e('s_add_u32 s15, s15, s3'); a.e('s_lshl_b32 s15, s15, 5'); a.e('v_mov_b32 v1, s15')
            for i in range(nst[0]): a.e(f'v_mov_b32 v2, s{64+2*i}'); a.e(f'buffer_store_dword v2, v1, s[36:39], 0 offen offset:{4*i}')
    fin_stamps()
    a.e(f's_branch {name}_end')
    a.label(f'{name}_H'); a.lg_issued=a.lg_done=0; a.vm_issued=a.vm_done=0; nst[0]=1
    KVR=24; KVT=80; AFR=96; BFR=112; DEN=128; NUM=24
    a.e('s_setprio 3')
    a.e('v_cmp_le_u32 s[54:55], 1, v4'); a.e('v_cmp_le_u32 s[60:61], 2, v4'); a.e('v_cmp_le_u32 s[62:63], 3, v4')
    mask={1:'s[54:55]',2:'s[60:61]',3:'s[62:63]'}
    a.e('s_mul_i32 s53, s44, %d'%(8*KV_HSTRIDE))
    a.e(f'v_lshlrev_b32 v13, 2, v1'); a.e(f'v_add_u32 v13, {name}_tab - {name}_pc, v13')
    for m in range(14):
        a.vm(f'buffer_load_dwordx4 {vr(KVR+4*m,4)}, v6, {KVs}, s53 offen offset:{(m%4)*1024}')
        kvt=a.vm(f'buffer_load_dword v{KVT+m}, v13, s[40:43], 0 offen offset:{m*256}')
        if m%4==3: a.e('s_add_u32 s53, s53, 4096')
    for ks in range(5):
        for j in range(4): pqt=a.vm(f'buffer_load_dwordx4 {ar((ks*4+j)*4,4)}, v5, {ACTs}, s{sAO+j} offen offset:{(ks%2)*2048}')
        if ks in (1,3):
            for j in range(4): a.e(f's_add_u32 s{sAO+j}, s{sAO+j}, 4096')
    for i in range(4): a.e(f'v_mov_b32 v{16+i}, 0')
    a.e('v_add_u32 v14, s52, v6')
    for i in range(19): a.ds(f'ds_write_b128 v14, v[16:19] offset:{i*1024}')
    a.e('s_mov_b32 exec_hi, 0'); a.ds(f'ds_write_b128 v14, v[16:19] offset:{19*1024}'); a.e('s_mov_b32 exec_hi, -1')
    a.e('v_and_b32 v15, 3, v1'); a.e('v_lshlrev_b32 v15, 6, v15'); a.e('v_lshl_add_u32 v15, v4, 4, v15'); a.e('v_add_u32 v15, s52, v15')
    a.wait_vm(kvt)
    for m in range(14):
        r=KVR+4*m
        a.e(f'v_cvt_pk_bf16_f32 v{r}, v{r}, v{r+1}'); a.e(f'v_cvt_pk_bf16_f32 v{r+1}, v{r+2}, v{r+3}')
        a.e(f'v_cmp_ne_u32 vcc, -1, v{KVT+m}'); a.e(f'v_add_u32 v{KVT+m}, s52, v{KVT+m}')
        a.e(f's_and_saveexec_b64 s[22:23], vcc'); a.ds(f'ds_write_b64 v{KVT+m}, {vr(r,2)}'); a.e('s_mov_b64 exec, s[22:23]')
    a.wait_all_lg(); a.wait_vm(pqt)
    stamp()
    for xy in range(2):
        for k in range(3): t=a.ds(f'ds_read_b128 {vr(AFR+4*k,4)}, v15 offset:{ZIMG+(xy*3+k)*256}')
        a.wait_lg(t)
        for k in range(3):
            for j in range(4):
                acc=vr(DEN+j*8+xy*4,4)
                a.e(f'v_mfma_f32_16x16x32_bf16 {acc}, {vr(AFR+4*k,4)}, {ar(((k+2*xy)*4+j)*4,4)}, {"0" if k==0 else acc}')
    def num(m):
        fl=[(e2,ks) for e2 in range(2) for ks in et_ks(2*m+e2)]
        for i,(e2,ks) in enumerate(fl): t=a.ds(f'ds_read_b128 {vr(AFR+4*i,4)}, v14 offset:{FIDX[(2*m+e2,ks)]*1024}')
        a.wait_lg(t); seen=set()
        for i,(e2,ks) in enumerate(fl):
            for j in range(4):
                acc=vr(NUM+32*(m%2)+j*8+e2*4,4)
                a.e(f'v_mfma_f32_16x16x32_bf16 {acc}, {vr(AFR+4*i,4)}, {ar((ks*4+j)*4,4)}, {"0" if e2 not in seen else acc}')
            seen.add(e2)
    num(0)
    for i in range(32): a.e(f'v_add_f32 v{DEN+i}, {f32(1e-6)}, v{DEN+i}')
    for i in range(32): a.e(f'v_rcp_f32 v{DEN+i}, v{DEN+i}')
    for m in range(5):
        if m<4: num(m+1)
        else: a.nop(8)
        for j in range(4):
            for e2 in range(2):
                et=2*m+e2; hs=[(4*et+q)//5 for q in range(4)]
                src=f'v{DEN+j*8+hs[0]}'
                for q in range(1,4):
                    if hs[q]!=hs[q-1]: a.e(f'v_cndmask_b32 v16, {src}, v{DEN+j*8+hs[q]}, {mask[q]}'); src='v16'
                r=NUM+32*(m%2)+j*8+e2*4
                for i in range(4): a.e(f'v_mul_f32 v{r+i}, v{r+i}, {src}')
                a.e(f'v_cvt_pk_bf16_f32 v{BFR+4*j+2*e2}, v{r}, v{r+1}'); a.e(f'v_cvt_pk_bf16_f32 v{BFR+4*j+2*e2+1}, v{r+2}, v{r+3}')
            a.ds(f'ds_write_b128 v20, {vr(BFR+4*j,4)} offset:{(m*4+j)*1024}')
    a.wait_all_lg()
    stamp()
    a.e('s_barrier'); a.e('s_barrier'); a.e('s_barrier')
    fin_stamps()
    a.label(f'{name}_end'); a.e('s_endpgm')
    a.e('.p2align 2'); a.label(f'{name}_tab')
    tab=kv_table()
    for i in range(0,len(tab),8): a.e('.long '+','.join(f'{x:#x}' for x in tab[i:i+8]))
    a.label(f'{name}_tabend')
    return a.text(), kernel_desc(name,256,176)
```

```python
import sys
from k0 import gen_k0, NWG
from k1v5 import gen_k1, LDS_TOTAL
from k2v5 import gen_k2
import build
def make(fn, opts=None, k2opts=None, only=None, k0sf=''):
    b0,d0=gen_k0(sf=k0sf,stamps=bool(opts and opts.get('stamps'))); b1,d1=gen_k1(opts=opts or {}); b2,d2=gen_k2(**(k2opts or {}))
    hdr='; parallel_sum(linear_attn_block, glu) : 3 launches\n'
    hdr+=f'; @launch kernel=k0_kernel grid=({NWG},1,1) block=(256,1,1) lds=16384\n'
    hdr+=f'; @launch kernel=k1_kernel grid=(256,1,1) block=(512,1,1) lds={LDS_TOTAL}\n'
    hdr+='; @launch kernel=k2_kernel grid=(256,1,1) block=(512,1,1) lds=161792\n'
    hdr+='.amdgcn_target "amdgcn-amd-amdhsa--gfx950"\n.text\n'
    open(fn,'w').write(hdr+b0+b1+b2+'code_end_all:\n.set CODE_BYTES_ALL, code_end_all - k0_kernel - 256\n.fill 64, 4, 0xBF800000\n.section .rodata,"a"\n.p2align 6\n'+d0+'.p2align 6\n'+d1+'.p2align 6\n'+d2)
if __name__=='__main__':
    make('k.s',opts=dict(prio=1,ilv=1)); build.build('k.s','k.co')
```

```python
from asmlib import *
from layout import *
import struct
def f32(x): return '0x%08x'%struct.unpack('<I',struct.pack('<f',x))[0]
NLN=128
def nwg(w1f): return NLN+((740+(1680 if w1f else 0))+3)//4
def gen_k0(name='k0_kernel',sf='',stamps=False,w1f=True):
    a=Asm(); NTASK=740+(1680 if w1f else 0); NWG=nwg(w1f)
    a.e('.p2align 8'); a.e(f'.globl {name}'); a.e(f'.type {name},@function'); a.label(name)
    a.e(f's_cmp_ge_u32 s2, {NWG}'); a.e(f's_cbranch_scc1 {name}_end')
    if stamps: a.e('s_memrealtime s[70:71]')
    a.e('s_load_dwordx16 s[8:23], s[0:1], 0'); a.e('s_load_dwordx2 s[24:25], s[0:1], 72')
    pX,pQKV,pWO,pG,pU,pWD,pWS=8,10,12,16,18,20,24
    a.e('v_and_b32 v1, 63, v0'); a.e('v_lshrrev_b32 v2, 6, v0'); a.e('v_and_b32 v3, 15, v1'); a.e('v_lshrrev_b32 v4, 4, v1')
    a.e('v_readfirstlane_b32 s3, v2')
    a.e('v_lshlrev_b32 v5, 4, v1')
    a.e('s_waitcnt lgkmcnt(0)')
    def mk(srd,ptr,off,size):
        if off: a.e(f's_add_u32 s{srd}, s{ptr}, {off:#x}'); a.e(f's_addc_u32 s{srd+1}, s{ptr+1}, 0')
        else: a.e(f's_mov_b32 s{srd}, s{ptr}'); a.e(f's_mov_b32 s{srd+1}, s{ptr+1}')
        a.e(f's_mov_b32 s{srd+2}, {size:#x}'); a.e(f's_mov_b32 s{srd+3}, 0x20000')
    a.e('s_lshl_b32 s4, s2, 8'); a.e('v_add_u32 v6, s4, v0'); a.e('v_lshlrev_b32 v7, 7, v6')
    if not w1f:
        mk(28,pQKV,0,640*PQ); mk(32,pG,0,640*PG); mk(36,pU,0,640*PG)
        a.e('buffer_load_dword v60, v7, s[28:31], 0 offen'); a.e(f'v_subrev_u32 v7, {640*PQ}, v7')
        a.e('buffer_load_dword v61, v7, s[32:35], 0 offen'); a.e(f'v_subrev_u32 v7, {640*PG}, v7')
        a.e('buffer_load_dword v62, v7, s[36:39], 0 offen'); a.e(f'v_subrev_u32 v7, {640*PG}, v7')
    a.e('s_getpc_b64 s[40:41]'); a.e('s_mov_b32 s42, CODE_BYTES_ALL'); a.e('s_mov_b32 s43, 0x20000')
    a.e('buffer_load_dword v63, v7, s[40:43], 0 offen')
    a.e(f's_cmp_ge_u32 s2, {NLN}'); a.e(f's_cbranch_scc1 {name}_rp')
    mk(40,pX,0,2048*1280); mk(44,pWS,XN_OFF,XN_SZ)
    a.e('s_lshl_b32 s4, s2, 4'); a.e('v_add_u32 v7, s4, v3'); a.e('s_movk_i32 s5, 1280'); a.e('v_mul_lo_u32 v7, v7, s5'); a.e('v_lshl_add_u32 v7, v4, 4, v7')
    a.e('s_mul_i32 s5, s3, 320')
    for i in range(5): t=a.vm(f'buffer_load_dwordx4 {vr(16+4*i,4)}, v7, s[40:43], s5 offen offset:{64*i}')
    a.e('v_mov_b32 v8, 0'); a.e('v_mov_b32 v9, 0')
    a.wait_vm(t)
    for i in range(20):
        a.e(f'v_lshlrev_b32 v{40+2*i}, 16, v{16+i}'); a.e(f'v_and_b32 v{41+2*i}, 0xffff0000, v{16+i}')
        a.e(f'v_add_f32 v8, v8, v{40+2*i}'); a.e(f'v_add_f32 v8, v8, v{41+2*i}')
    for (r,t0) in ((8,10),):
        a.e(f'v_mov_b32 v10, v8'); a.e('s_nop 1'); a.e('v_permlane32_swap_b32 v8, v10'); a.e('s_nop 1'); a.e('v_add_f32 v8, v8, v10')
        a.e(f'v_mov_b32 v10, v8'); a.e('s_nop 1'); a.e('v_permlane16_swap_b32 v8, v10'); a.e('s_nop 1'); a.e('v_add_f32 v8, v8, v10')
    a.e('v_lshlrev_b32 v11, 2, v3'); a.e('s_lshl_b32 s4, s3, 6'); a.e('v_add_u32 v12, s4, v11')
    a.ds('ds_write_b32 v12, v8'); a.wait_all_lg(); a.e('s_barrier')
    for w in range(4): a.ds(f'ds_read_b32 v{80+w}, v11 offset:{64*w}')
    a.wait_all_lg()
    a.e('v_add_f32 v80, v80, v81'); a.e('v_add_f32 v82, v82, v83'); a.e('v_add_f32 v80, v80, v82'); a.e(f'v_mul_f32 v80, {f32(1/640)}, v80')
    for i in range(40):
        a.e(f'v_sub_f32 v{40+i}, v{40+i}, v80'); a.e(f'v_fma_f32 v9, v{40+i}, v{40+i}, v9')
    a.e(f'v_mov_b32 v10, v9'); a.e('s_nop 1'); a.e('v_permlane32_swap_b32 v9, v10'); a.e('s_nop 1'); a.e('v_add_f32 v9, v9, v10')
    a.e(f'v_mov_b32 v10, v9'); a.e('s_nop 1'); a.e('v_permlane16_swap_b32 v9, v10'); a.e('s_nop 1'); a.e('v_add_f32 v9, v9, v10')
    a.ds('ds_write_b32 v12, v9 offset:256'); a.wait_all_lg(); a.e('s_barrier')
    for w in range(4): a.ds(f'ds_read_b32 v{81+w}, v11 offset:{256+64*w}')
    a.wait_all_lg()
    a.e('v_add_f32 v81, v81, v82'); a.e('v_add_f32 v83, v83, v84'); a.e('v_add_f32 v81, v81, v83')
    a.e(f'v_mul_f32 v81, {f32(1/640)}, v81'); a.e(f'v_add_f32 v81, {f32(1e-5)}, v81'); a.e('v_rsq_f32 v81, v81'); a.e('s_nop 0')
    a.e('s_lshr_b32 s4, s2, 1'); a.e('s_mul_i32 s4, s4, 40'); a.e('s_and_b32 s5, s2, 1'); a.e('s_add_u32 s4, s4, s5'); a.e('s_mul_i32 s5, s3, 10'); a.e('s_add_u32 s4, s4, s5'); a.e('s_lshl_b32 s4, s4, 10')
    for i in range(5):
        for j in range(4):
            k=4*i+j
            a.e(f'v_mul_f32 v{40+2*k}, v{40+2*k}, v81'); a.e(f'v_mul_f32 v{41+2*k}, v{41+2*k}, v81')
            a.e(f'v_cvt_pk_bf16_f32 v{16+k}, v{40+2*k}, v{41+2*k}')
        a.vm(f'buffer_store_dwordx4 {vr(16+4*i,4)}, v5, s[44:47], s4 offen{sf}')
        if i<4: a.e('s_add_u32 s4, s4, 2048')
    a.e(f's_branch {name}_fin')
    a.label(f'{name}_rp')
    mk(40,pWO,0,640*1280); mk(44,pWD,0,1728*1280); mk(48,pWS,W2F_OFF,W2F_SZ); mk(52,pWS,KV_OFF,KV_SZ)
    a.e(f's_sub_u32 s4, s2, {NLN}'); a.e('s_lshl_b32 s5, s4, 8'); a.e('v_add_u32 v7, s5, v0'); a.e('v_lshlrev_b32 v7, 4, v7')
    for i in range(4): a.e(f'v_mov_b32 v{8+i}, 0')
    a.e('buffer_store_dwordx4 v[8:11], v7, s[52:55], 0 offen')
    a.e('s_lshl_b32 s4, s4, 2'); a.e('s_add_u32 s4, s4, s3')
    a.e(f's_cmp_ge_u32 s4, {NTASK}'); a.e(f's_cbranch_scc1 {name}_fin')
    mk(28,pQKV,0,640*PQ); mk(32,pG,0,640*PG); mk(36,pU,0,640*PG); mk(64,pWS,W1F_OFF,W1F_SZ)
    lw2=a.newlabel('Lw2'); lq=a.newlabel('Lq'); lgo=a.newlabel('Lgo')
    a.e('s_cmp_lt_u32 s4, 740'); a.e(f's_cbranch_scc1 {lw2}')
    a.e('s_cmp_lt_u32 s4, 1340'); a.e(f's_cbranch_scc1 {lq}')
    a.e('s_sub_u32 s4, s4, 1340'); a.e('s_cmp_ge_u32 s4, 540'); a.e('s_cselect_b32 s27, 1, 0')
    for i in range(3): a.e(f's_cselect_b32 s{56+i}, s{36+i}, s{32+i}')
    a.e('s_cselect_b32 s5, 540, 0'); a.e('s_sub_u32 s4, s4, s5')
    a.e('s_mul_i32 s5, s4, 2428'); a.e('s_lshr_b32 s5, s5, 16')
    a.e('s_mul_i32 s6, s5, 27'); a.e('s_sub_u32 s6, s4, s6')
    a.e(f's_mul_i32 s7, s5, {32*PG}'); a.e('s_lshl_b32 s26, s6, 7'); a.e('s_add_u32 s7, s7, s26'); a.e(f's_movk_i32 s26, {PG}')
    a.e('s_lshl_b32 s6, s6, 3'); a.e('s_add_u32 s6, s6, s27'); a.e('s_add_u32 s6, s6, 120'); a.e('s_movk_i32 s68, 4096')
    a.e(f's_branch {lgo}_w1')
    a.label(lq)
    a.e('s_sub_u32 s4, s4, 740')
    for i in range(3): a.e(f's_mov_b32 s{56+i}, s{28+i}')
    a.e('s_mul_i32 s5, s4, 2185'); a.e('s_lshr_b32 s5, s5, 16')
    a.e('s_mul_i32 s6, s5, 30'); a.e('s_sub_u32 s6, s4, s6')
    a.e(f's_mul_i32 s7, s5, {32*PQ}'); a.e('s_lshl_b32 s26, s6, 7'); a.e('s_add_u32 s7, s7, s26'); a.e(f's_movk_i32 s26, {PQ}')
    a.e('s_lshl_b32 s6, s6, 2'); a.e('s_movk_i32 s68, 2048')
    a.label(f'{lgo}_w1')
    a.e('s_lshr_b32 s27, s5, 1'); a.e('s_mul_i32 s27, s27, 336'); a.e('s_add_u32 s27, s27, s6'); a.e('s_lshl_b32 s27, s27, 11'); a.e('s_and_b32 s5, s5, 1'); a.e('s_lshl_b32 s5, s5, 10'); a.e('s_add_u32 s69, s27, s5')
    for i in range(2): a.e(f's_mov_b32 s{48+i}, s{64+i}')
    a.e(f's_mov_b32 s50, {W1F_SZ:#x}')
    a.e('s_movk_i32 s5, 20')
    a.e(f's_branch {lgo}')
    a.label(lw2)
    a.e('s_mul_i32 s5, s4, 205'); a.e('s_lshr_b32 s5, s5, 11'); a.e('s_mul_i32 s6, s5, 10'); a.e('s_sub_u32 s6, s4, s6')
    a.e('s_lshl_b32 s7, s5, 5'); a.e('s_sub_u32 s26, s5, 20'); a.e('s_lshl_b32 s26, s26, 5')
    a.e('s_cmp_lt_u32 s5, 20')
    for i in range(3): a.e(f's_cselect_b32 s{56+i}, s{40+i}, s{44+i}')
    a.e('s_cselect_b32 s7, s7, s26'); a.e('s_mul_i32 s7, s7, 1280'); a.e('s_lshl_b32 s26, s6, 7'); a.e('s_add_u32 s7, s7, s26')
    a.e('s_mul_i32 s69, s5, 40'); a.e('s_lshl_b32 s27, s6, 2'); a.e('s_add_u32 s69, s69, s27'); a.e('s_lshl_b32 s69, s69, 10'); a.e('s_movk_i32 s68, 1024'); a.e('s_movk_i32 s26, 1280')
    a.label(lgo)
    a.e('s_mov_b32 s59, 0x20000')
    a.e('v_lshrrev_b32 v7, 2, v1'); a.e('v_mul_lo_u32 v8, v7, s26')
    a.e('v_lshrrev_b32 v7, 3, v7'); a.e('v_lshlrev_b32 v7, 1, v7'); a.e('v_and_b32 v9, 3, v1'); a.e('v_xor_b32 v7, v7, v9'); a.e('v_lshl_add_u32 v8, v7, 4, v8')
    a.e('s_lshl_b32 s28, s26, 4')
    a.e('s_lshl_b32 s26, s3, 12')
    t=None
    for img in range(2):
        for half in range(2):
            a.e(f's_add_u32 m0, s26, {img*2048+half*1024}')
            a.e(f's_add_u32 s27, s7, {img*64}')
            if half: a.e('s_add_u32 s27, s27, s28')
            t=a.vm('buffer_load_dwordx4 v8, s[56:59], s27 offen lds')
    a.e('v_lshrrev_b32 v9, 2, v3'); a.e('v_and_b32 v10, 3, v3')
    a.e('v_lshl_add_u32 v11, v4, 3, v9'); a.e('v_lshlrev_b32 v11, 6, v11'); a.e('v_and_b32 v12, 1, v4'); a.e('v_lshl_add_u32 v11, v12, 5, v11'); a.e('v_lshl_add_u32 v11, v10, 3, v11')
    a.e('v_add_u32 v13, 256, v11')
    a.e('v_lshl_add_u32 v14, v4, 2, v9'); a.e('v_lshlrev_b32 v14, 6, v14'); a.e('v_lshrrev_b32 v12, 1, v4'); a.e('v_lshl_add_u32 v14, v12, 5, v14'); a.e('v_lshl_add_u32 v14, v10, 3, v14')
    a.e('v_add_u32 v15, 1024, v14')
    a.e('s_cmp_lt_u32 s5, 20'); a.e('s_cselect_b64 vcc, -1, 0')
    a.e('v_cndmask_b32 v11, v11, v14, vcc'); a.e('v_cndmask_b32 v13, v13, v15, vcc')
    a.e('v_add_u32 v11, s26, v11'); a.e('v_add_u32 v13, s26, v13')
    a.e('v_xor_b32 v14, 32, v11'); a.e('v_xor_b32 v15, 32, v13')
    a.wait_vm(t)
    for img in range(2):
        for hf in range(2):
            d=16+4*(2*img+hf)
            a.ds(f'ds_read_b64_tr_b16 {vr(d,2)}, v{14 if hf else 11} offset:{img*2048}')
            a.ds(f'ds_read_b64_tr_b16 {vr(d+2,2)}, v{15 if hf else 13} offset:{img*2048}')
    a.wait_all_lg()
    for i in range(4):
        a.vm(f'buffer_store_dwordx4 {vr(16+4*i,4)}, v5, s[48:51], s69 offen{sf}')
        if i<3: a.e('s_add_u32 s69, s69, s68')
    a.label(f'{name}_fin')
    if stamps:
        a.e('s_waitcnt vmcnt(0)'); a.e('s_memrealtime s[72:73]'); a.e('s_waitcnt lgkmcnt(0)')
        a.e(f's_add_u32 s52, s24, {STAMP_OFF+0xC0000:#x}'); a.e('s_addc_u32 s53, s25, 0'); a.e('s_mov_b32 s54, 0x40000'); a.e('s_mov_b32 s55, 0x20000')
        a.e('s_lshl_b32 s4, s2, 2'); a.e('s_add_u32 s4, s4, s3'); a.e('s_lshl_b32 s4, s4, 3'); a.e('v_mov_b32 v1, s4'); a.e('v_mov_b32 v2, s70'); a.e('v_mov_b32 v3, s72')
        a.e('buffer_store_dwordx2 v[2:3], v1, s[52:55], 0 offen')
    a.label(f'{name}_end'); a.e('s_endpgm')
    return a.text(), kernel_desc(name,96,96,80)
```

```python
from asmlib import *
from layout import *
import struct
def f32(x): return '0x%08x'%struct.unpack('<I',struct.pack('<f',x))[0]
LOG2E=1.4426950408889634
SLOT0=[0,36864,73728,110592]
SLOT1=[73728,122880,0,98304]
STG=24576
ONES=147456
LDS_TOTAL=148480
PKP=272
PK_B=STG; V_B=STG+80*PKP
KVS=STG+2*80*PKP
def slot(g): return SLOT0[g%4] if g<10 else SLOT1[(g-10)%4]
vF=1
vX=2
vL16=3; vTMP=4; vM0,vM1,vM2,vM3=5,6,7,8
NR=8
RING=16
ACC=48
sW,sR,sC,sRB,sJOB=3,4,5,6,7
pXX,pQKV,pWO,pBX,pG,pU,pWD,pOUT,pDBG,pWS=8,10,12,14,16,18,20,22,24,26
srdX,srdW,srdACT,srdKV,srdST=28,32,36,40,44
sMX,sX0,sMW0,sMW1,sWO0,sWO1=48,49,50,51,52,53
sACT,sP0,sP1=54,55,56
sT=60
class Group:
    def __init__(s,kind,P=0,swapped=False,wofs=0):
        s.kind=kind; s.P=P; s.swapped=swapped; s.wofs=wofs
        s.U = 2*P if kind=='gu' else 5
def groups_of(typ,c):
    if typ=='B':
        return [Group('gu',3,wofs=0),Group('gu',3,wofs=0)] if c==0 else [Group('gu',2,wofs=12288),Group('gu',3,wofs=12288)]
    return [Group('plain',swapped=True,wofs=0),Group('plain',wofs=0)] if c==0 else [Group('plain',swapped=True,wofs=10240),Group('gu',3,wofs=10240)]
class Prog:
    def __init__(p,a,typ,c,opts):
        p.a=a; p.typ=typ; p.c=c; p.o=opts; p.origin={}; p.groups=groups_of(typ,c)
    def addr(p,reg,absoff,base):
        o=p.origin.get(reg,0)
        if not (0<=absoff-o<=65535):
            d=(base-o)&0xffffffff
            p.a.e(f'v_add_u32 v{reg}, {d:#x}, v{reg}'); p.origin[reg]=base; o=base
        return f'v{reg}', absoff-o
    def nW(p,G): return (2*G.U+3)//4
    def dma_ops(p,g,toks):
        a=p.a; grp=g//10; base=slot(g); ops=[]; G=p.groups[grp]
        if p.o.get('nodma') and g>=3: return []
        if grp==0:
            def f():
                a.e(f's_add_u32 m0, s{sMX}, {base+20480:#x}'); a.e(f's_add_u32 s{sX0}, s{sX0}, 4096')
                for i in (2*p.c,2*p.c+1): toks.append(a.vm(f'buffer_load_dwordx4 v{vL16}, {sr(srdX,4)}, s{sX0} offen offset:{i*1024} lds'))
            ops.append(f)
        sM=(sMW0,sMW1)[grp]; sO=(sWO0,sWO1)[grp]
        def f():
            a.e(f's_add_u32 m0, s{sM}, {base+G.wofs:#x}'); a.e(f's_add_u32 s{sO}, s{sO}, {336*2048}')
            for i in range(p.nW(G)): toks.append(a.vm(f'buffer_load_dwordx4 v{vL16}, {sr(srdW,4)}, s{sO} offen offset:{i*1024} lds'))
        ops.append(f)
        return ops

def gen_k1(name='k1_kernel',opts=None):
    opts=opts or {}
    a=Asm()
    a.e('.p2align 8'); a.e(f'.globl {name}'); a.e(f'.type {name},@function'); a.label(name)
    a.e('s_cmp_ge_u32 s2, 256'); a.e(f's_cbranch_scc1 {name}_end')
    a.e('s_load_dwordx2 s[26:27], s[0:1], 72')
    if opts.get('stamps'): a.e('s_memrealtime s[90:91]')
    a.e(f's_getpc_b64 s[{srdST}:{srdST+1}]'); a.e(f's_mov_b32 s{srdST+2}, CODE_BYTES_K1'); a.e(f's_mov_b32 s{srdST+3}, 0x20000')
    a.e('v_lshlrev_b32 v95, 7, v0')
    a.e(f'buffer_load_dword v94, v95, {sr(srdST,4)}, 0 offen')
    a.e(f'v_lshrrev_b32 v48, 6, v0'); a.e(f'v_and_b32 v49, 63, v0')
    a.e(f'v_readfirstlane_b32 s{sW}, v48'); a.e(f'v_lshlrev_b32 v{vL16}, 4, v49')
    a.e(f's_and_b32 s{sT}, s2, 7'); a.e(f's_lshr_b32 s{sT+1}, s2, 3')
    a.e(f's_and_b32 s{sRB}, s{sT}, 1'); a.e(f's_lshl_b32 s{sRB}, s{sRB}, 3'); a.e(f's_and_b32 s{sT+2}, s{sT+1}, 7'); a.e(f's_add_u32 s{sRB}, s{sRB}, s{sT+2}')
    a.e(f's_lshr_b32 s{sJOB}, s{sT}, 1'); a.e(f's_lshl_b32 s{sJOB}, s{sJOB}, 2'); a.e(f's_lshr_b32 s{sT+2}, s{sT+1}, 3'); a.e(f's_add_u32 s{sJOB}, s{sJOB}, s{sT+2}')
    a.e(f's_and_b32 s{sR}, s{sW}, 3'); a.e(f's_lshr_b32 s{sC}, s{sW}, 2')
    a.e(f's_lshl_b32 s{sMX}, s{sR}, 12'); a.e(f's_add_u32 s{sT}, s{sMX}, 20480'); a.e(f'v_add_u32 v{vX}, s{sT}, v{vL16}')
    a.e(f's_lshl_b32 s{sT}, s{sRB}, 2'); a.e(f's_add_u32 s{sT}, s{sT}, s{sR}'); a.e(f's_mul_i32 s{sX0}, s{sT}, {40*1024}'); a.e(f's_sub_u32 s{sX0}, s{sX0}, 4096'); a.e(f's_mul_i32 s{sACT}, s{sT}, {148*1024}')
    a.e(f's_cmp_lt_u32 s{sJOB}, 8'); a.e(f's_cbranch_scc1 {name}_A')
    a.e(f's_cmp_eq_u32 s{sC}, 0'); a.e(f's_cbranch_scc0 {name}_B1'); a.e(f's_branch {name}_B0')
    a.label(f'{name}_A'); a.e(f's_cmp_eq_u32 s{sC}, 0'); a.e(f's_cbranch_scc0 {name}_A1'); a.e(f's_branch {name}_A0')
    for typ,c in (('B',0),('B',1),('A',0),('A',1)):
        a.label(f'{name}_{typ}{c}')
        a.lg_issued=a.lg_done=0; a.vm_issued=a.vm_done=0
        program(a,typ,c,opts)
        a.e(f's_branch {name}_end')
    a.label(f'{name}_end'); a.e('s_endpgm')
    a.e(f'.set CODE_BYTES_K1, {name}_end - {name}')
    return a.text(), kernel_desc(name,256,96)

def program(a,typ,c,opts):
    p=Prog(a,typ,c,opts); G0,G1=p.groups
    nst=[0]
    def mk(srd,ptr,off,size):
        if off: a.e(f's_add_u32 s{srd}, s{ptr}, {off:#x}'); a.e(f's_addc_u32 s{srd+1}, s{ptr+1}, 0')
        else: a.e(f's_mov_b32 s{srd}, s{ptr}'); a.e(f's_mov_b32 s{srd+1}, s{ptr+1}')
        a.e(f's_mov_b32 s{srd+2}, {size:#x}'); a.e(f's_mov_b32 s{srd+3}, 0x20000')
    def stamp():
        if opts.get('stamps'):
            a.e(f's_{"memtime" if opts.get("cyc") else "memrealtime"} s[{sT+12}:{sT+13}]'); a.e('s_waitcnt lgkmcnt(0)'); a.lg_done=a.lg_issued
            a.e(f'v_mov_b32 v{vTMP}, s{sT+12}'); a.e(f's_lshl_b32 s{sT+11}, s2, 3'); a.e(f's_add_u32 s{sT+11}, s{sT+11}, s{sW}'); a.e(f's_lshl_b32 s{sT+11}, s{sT+11}, 7')
            a.e(f'v_mov_b32 v0, s{sT+11}')
            a.vm(f'buffer_store_dword v{vTMP}, v0, {sr(srdST,4)}, 0 offen offset:{4*nst[0]}'); nst[0]+=1
    def barrier(): a.e('s_barrier')
    if typ=='B':
        a.e(f's_sub_u32 s{sT}, s{sJOB}, 8'); a.e(f's_mul_i32 s{sT}, s{sT}, 21'); a.e(f's_lshr_b32 s{sT}, s{sT}, 1'); a.e(f's_add_u32 s{sT}, s{sT}, 24')
        a.e(f's_add_u32 s{sP0}, s{sT}, {0 if c==0 else 3}'); a.e(f's_add_u32 s{sP1}, s{sT}, {5 if c==0 else 8}')
        for grp,sp in ((0,sP0),(1,sP1)): a.e(f's_lshl_b32 s{sT+2+grp}, s{sp}, 1'); a.e(f's_add_u32 s{sT+2+grp}, s{sT+2+grp}, 120')
    else:
        a.e(f's_mul_i32 s{sT}, s{sJOB}, 5'); a.e(f's_mul_i32 s{sP1}, s{sJOB}, 3')
        if c==0: a.e(f's_add_u32 s{sT+2}, s{sT}, 40'); a.e(f's_mov_b32 s{sT+3}, s{sT}')
        else: a.e(f's_add_u32 s{sT+2}, s{sT}, 80'); a.e(f's_lshl_b32 s{sT+3}, s{sP1}, 1'); a.e(f's_add_u32 s{sT+3}, s{sT+3}, 120')
    for grp,G in enumerate(p.groups):
        n=p.nW(G); sM=(sMW0,sMW1)[grp]; sO=(sWO0,sWO1)[grp]
        a.e(f's_mul_i32 s{sT+4}, s{sR}, {n}'); a.e(f's_min_u32 s{sT+4}, s{sT+4}, {2*G.U-n}'); a.e(f's_lshl_b32 s{sM}, s{sT+4}, 10')
        a.e(f's_lshl_b32 s{sO}, s{sT+2+grp}, 11'); a.e(f's_add_u32 s{sO}, s{sO}, s{sM}'); a.e(f's_sub_u32 s{sO}, s{sO}, {336*2048}')
    a.e('s_waitcnt lgkmcnt(0)')
    mk(srdX,pWS,XN_OFF,XN_SZ); mk(srdW,pWS,W1F_OFF,W1F_SZ)
    dt={}
    for g in range(3):
        dt[g]=[]
        for f in p.dma_ops(g,dt[g]): f()
    mk(srdACT,pWS,ACT_OFF,ACT_SZ); mk(srdKV,pWS,KV_OFF,KV_SZ); mk(srdST,pWS,STAMP_OFF,STAMP_SZ)
    a.e(f'v_add_u32 v{vF}, {G0.wofs}, v{vL16}')
    if typ=='A' and c==0:
        for i in range(4): a.e(f'v_mov_b32 v{60+i}, 0x3f803f80')
        a.e(f'v_add_u32 v{vTMP}, {ONES}, v{vL16}')
        a.e(f's_cmp_eq_u32 s{sR}, 0'); lz=a.newlabel('Lz'); a.e(f's_cbranch_scc0 {lz}')
        a.e('s_mov_b64 exec, 0xffff'); a.ds(f'ds_write_b128 v{vTMP}, v[60:63]'); a.e('s_mov_b64 exec, -1'); a.label(lz)
        a.wait_all_lg()
    stamp()
    if opts.get('stamps'):
        a.e(f'v_mov_b32 v{vTMP}, s90'); a.vm(f'buffer_store_dword v{vTMP}, v0, {sr(srdST,4)}, 0 offen offset:124')
    xtok={}
    def x_ops(g):
        base=slot(g); ops=[]
        for T in range(2):
            for sg in range(2):
                def f(T=T,sg=sg):
                    r,o=p.addr(vX, base+T*2048+sg*1024, base)
                    xtok[(2*g+T,sg)]=a.ds(f'ds_read_b128 {ar(((2*g+T)*2+sg)*4,4)}, {r} offset:{o}')
                ops.append(f)
        return ops
    a.wait_vm(dt[0][-1]); barrier()
    stamp()
    for f in x_ops(0): f()
    extra={}
    def add_extra(g,f): extra.setdefault(g,[]).append(f)
    ctx=dict(p=p,a=a,typ=typ,c=c,opts=opts,add_extra=add_extra,barrier=barrier,stamp=stamp)
    if typ=='A': add_extra(18,lambda: kv_atomics(ctx))
    pend=[]
    def make_slots(g,nsl):
        R=[[] for _ in range(nsl)]; B=[[] for _ in range(nsl)]
        if g+1<10:
            for i,f in enumerate(x_ops(g+1)): R[i//2].append(f)
        d=[]
        if g+3<20:
            dt[g+3]=[]; d+=p.dma_ops(g+3,dt[g+3])
        for i,f in enumerate(d): B[min(nsl-1,1+(i*nsl)//max(1,len(d)))].append(f)
        for i,f in enumerate(extra.get(g,[])): B[min(nsl-1,2)].append(f)
        return list(zip(R,B))
    DIST=opts.get('dist',NR-1)
    for grp in range(2):
        G=p.groups[grp]; U=G.U; ftok={}
        if grp==1 and G1.wofs!=G0.wofs: raise Exception('wofs')
        def rd_frag(n):
            gl,rem=divmod(n,2*U); T,t=divmod(rem,U); base=slot(grp*10+gl)
            r,o=p.addr(vF, base+(t*2+T)*1024, base)
            ftok[n]=a.ds(f'ds_read_b128 {vr(RING+4*(n%NR),4)}, {r} offset:{o}')
        N=20*U; st=dict(nxt=0)
        def prefetch(ok,n):
            while st['nxt']<min(N,n+DIST+1) and (st['nxt']//(2*U))<=ok:
                rd_frag(st['nxt']); st['nxt']+=1
        stage_ok=0
        prefetch(0,-1)
        for n in range(N):
            gl,rem=divmod(n,2*U); T,t=divmod(rem,U); g=grp*10+gl
            if rem==0 and gl in (0,2,4,6,8): stamp()
            cur = pend.pop(0) if pend else ([],[])
            prefetch(stage_ok,n-1)
            a.wait_lg(ftok[n])
            mf=[]
            for sg in range(2):
                if grp==0: a.wait_lg(xtok[(2*gl+T,sg)])
                acc=vr(ACC+(2*t+sg)*4,4); W=vr(RING+4*(n%NR),4); X=ar(((2*gl+T)*2+sg)*4,4)
                C='0' if (gl==0 and T==0) else acc
                mf.append(f'v_mfma_f32_16x16x32_bf16 {acc}, {X}, {W}, {C}' if G.swapped else f'v_mfma_f32_16x16x32_bf16 {acc}, {W}, {X}, {C}')
            a.e(mf[0])
            if opts.get('prio'): a.e('s_setprio 1')
            prefetch(stage_ok,n)
            for f in cur[0]: f()
            a.e(mf[1])
            if opts.get('prio'): a.e('s_setprio 0')
            for f in cur[1]: f()
            if rem==U-1 and g+1<20:
                assert not pend
                a.wait_vm(dt[g+1][-1] if dt[g+1] else None)
                barrier(); stage_ok=gl+1
                pend=make_slots(g,U+p.groups[(g+1)//10].U)
        stamp()
        epilogue(ctx,grp)
        stamp()
    a.wait_all_vm() if opts.get('stamps') else None
    stamp()

def phi4(a,r0):
    T=RING
    for i in range(4): a.e(f'v_mul_f32 v{T+i}, {f32(LOG2E)}, v{r0+i}')
    for i in range(4): a.e(f'v_min_f32 v{T+i}, 0, v{T+i}')
    for i in range(4): a.e(f'v_exp_f32 v{T+i}, v{T+i}')
    for i in range(4): a.e(f'v_add_f32 v{r0+i}, {f32(1e-6)}, v{r0+i}')
    for i in range(4): a.e(f'v_max_f32 v{r0+i}, {f32(1e-6)}, v{r0+i}')
    for i in range(4): a.e(f'v_add_f32 v{r0+i}, v{r0+i}, v{T+i}')
SF=['']
def store_tile(a,rA,rB,dst4,soff,off):
    a.e(f'v_cvt_pk_bf16_f32 v{dst4}, v{rA}, v{rA+1}'); a.e(f'v_cvt_pk_bf16_f32 v{dst4+1}, v{rA+2}, v{rA+3}')
    a.e(f'v_cvt_pk_bf16_f32 v{dst4+2}, v{rB}, v{rB+1}'); a.e(f'v_cvt_pk_bf16_f32 v{dst4+3}, v{rB+2}, v{rB+3}')
    a.e('s_nop 1')
    a.e(f'v_permlane16_swap_b32 v{dst4}, v{dst4+2}'); a.e(f'v_permlane16_swap_b32 v{dst4+1}, v{dst4+3}')
    a.e('s_nop 0')
    a.vm(f'buffer_store_dwordx4 {vr(dst4,4)}, v{vL16}, {sr(srdACT,4)}, s{soff} offen offset:{off}{SF[0]}')
KVST=STG+2*80*PKP
def epilogue(ctx,grp):
    a=ctx['a']; p=ctx['p']; G=p.groups[grp]; c=ctx['c']
    a.nop(6)
    SF[0]=ctx['opts'].get('sf%d'%grp,'')
    if G.kind=='gu':
        sP=(sP0,sP1)[grp]
        a.e(f's_lshl_b32 s{sT}, s{sP}, 10'); a.e(f's_add_u32 s{sT}, s{sT}, s{sACT}'); a.e(f's_add_u32 s{sT}, s{sT}, {40*1024}')
        for j in range(G.P):
            for sg in range(2):
                g0=ACC+(4*j+sg)*4; u0=ACC+(4*j+2+sg)*4
                for i in range(4): a.e(f'v_mul_f32 v{g0+i}, {f32(-LOG2E)}, v{g0+i}')
                for i in range(4): a.e(f'v_exp_f32 v{g0+i}, v{g0+i}')
                a.e('s_nop 0')
                for i in range(4): a.e(f'v_add_f32 v{g0+i}, 1.0, v{g0+i}')
                for i in range(4): a.e(f'v_rcp_f32 v{g0+i}, v{g0+i}')
                a.e('s_nop 0')
                for i in range(4): a.e(f'v_mul_f32 v{u0+i}, v{u0+i}, v{g0+i}')
            store_tile(a,ACC+(4*j+2)*4,ACC+(4*j+3)*4,RING+4+4*(j%2),sT,j*1024)
    elif not G.swapped:
        a.e(f's_mul_i32 s{sT}, s{sJOB}, {5*1024}'); a.e(f's_add_u32 s{sT}, s{sT}, s{sACT}'); a.e(f's_add_u32 s{sT+1}, s{sT}, 4096')
        for t in range(5):
            for sg in range(2): phi4(a,ACC+(2*t+sg)*4)
            store_tile(a,ACC+(2*t)*4,ACC+(2*t+1)*4,RING+4+4*(t%2),sT if t<4 else sT+1,(t%4)*1024)
    else:
        ctx['barrier']()
        base = PK_B if c==0 else V_B
        a.e(f'v_bfe_u32 v{vM0}, v{vL16}, 4, 4'); a.e(f's_movk_i32 s{sT}, {PKP}'); a.e(f'v_mul_lo_u32 v{vM0}, v{vM0}, s{sT}')
        a.e(f'v_lshrrev_b32 v{vM1}, 8, v{vL16}'); a.e(f'v_lshl_add_u32 v{vM0}, v{vM1}, 3, v{vM0}')
        a.e(f's_lshl_b32 s{sT}, s{sR}, 6'); a.e(f's_add_u32 s{sT}, s{sT}, {base}'); a.e(f'v_add_u32 v{vM0}, s{sT}, v{vM0}')
        for t in range(5):
            for sg in range(2):
                r0=ACC+(2*t+sg)*4
                if c==0: phi4(a,r0)
                d=RING+4+2*((2*t+sg)%4)
                a.e(f'v_cvt_pk_bf16_f32 v{d}, v{r0}, v{r0+1}'); a.e(f'v_cvt_pk_bf16_f32 v{d+1}, v{r0+2}, v{r0+3}')
                a.ds(f'ds_write_b64 v{vM0}, {vr(d,2)} offset:{16*t*PKP+32*sg}')
        a.wait_all_lg(); ctx['barrier']()
        a.e(f'v_bfe_u32 v{vM1}, v{vL16}, 4, 4')
        a.e(f'v_lshrrev_b32 v{vM2}, 8, v{vL16}'); a.e(f'v_lshlrev_b32 v{vM2}, 4, v{vM2}')
        a.e(f's_mul_i32 s{sT}, s{sR}, {20*PKP}'); a.e(f's_movk_i32 s{sT+1}, {PKP}')
        a.e(f'v_mul_lo_u32 v{vM0}, v{vM1}, s{sT+1}'); a.e(f'v_add_u32 v{vM0}, s{sT}, v{vM0}'); a.e(f'v_add_u32 v{vM0}, v{vM0}, v{vM2}')
        a.e(f'v_add_u32 v{vM3}, {PK_B}, v{vM0}')
        a.e(f'v_add_u32 v{vM0}, {V_B+16*c*PKP}, v{vM0}')
        if c==1:
            a.e(f'v_add_u32 v{vM2}, {ONES}, v{vM2}'); a.e(f'v_cmp_lt_u32 vcc, 3, v{vM1}'); a.e('s_nop 1'); a.e(f'v_cndmask_b32 v{vM0}, v{vM0}, v{vM2}, vcc')
        AF=RING; BF=RING+16
        for ks in range(4): a.ds(f'ds_read_b128 {vr(AF+4*ks,4)}, v{vM0} offset:{64*ks}')
        D=ACC+32; tk={}
        for dt_ in range(2):
            for ks in range(4): tk[(dt_,ks)]=a.ds(f'ds_read_b128 {vr(BF+4*ks if dt_==0 else ACC+16+4*ks,4)}, v{vM3} offset:{dt_*16*PKP+64*ks}')
        for dt_ in range(2):
            for ks in range(4):
                a.wait_lg(tk[(dt_,ks)])
                B=vr(BF+4*ks if dt_==0 else ACC+16+4*ks,4)
                a.e(f'v_mfma_f32_16x16x32_bf16 {vr(D+4*dt_,4)}, {vr(AF+4*ks,4)}, {B}, {"0" if ks==0 else vr(D+4*dt_,4)}')
        a.e(f's_lshl_b32 s{sT}, s{sW}, 11'); a.e(f's_add_u32 s{sT}, s{sT}, {STASH}'); a.e(f's_cmp_eq_u32 s{sW}, 7'); a.e(f's_cselect_b32 s{sT}, 68096, s{sT}'); a.e(f'v_add_u32 v{vM0}, s{sT}, v{vL16}')
        a.nop(6)
        for dt_ in range(2): a.ds(f'ds_write_b128 v{vM0}, {vr(D+4*dt_,4)} offset:{dt_*1024}')
        a.wait_all_lg()
STASH=ONES+1024
def kv_atomics(ctx):
    a=ctx['a']; c=ctx['c']
    D=9
    a.e(f's_lshl_b32 s{sT}, s{sW}, 11'); a.e(f's_add_u32 s{sT}, s{sT}, {STASH}'); a.e(f's_cmp_eq_u32 s{sW}, 7'); a.e(f's_cselect_b32 s{sT}, 68096, s{sT}'); a.e(f'v_add_u32 v{vM0}, s{sT}, v{vL16}')
    a.e(f'v_bfe_u32 v{vM1}, v{vL16}, 4, 4'); a.e(f'v_lshrrev_b32 v{vM2}, 8, v{vL16}')
    a.e(f'v_mul_u32_u24 v{vM3}, 320, v{vM2}'); a.e(f'v_lshl_add_u32 v{vM3}, v{vM1}, 2, v{vM3}')
    a.e(f's_lshl_b32 s{sT}, s{sJOB}, 2'); a.e(f's_add_u32 s{sT}, s{sT}, s{sR}'); a.e(f's_mul_i32 s{sT}, s{sT}, {KV_HSTRIDE}'); a.e(f's_add_u32 s{sT}, s{sT}, {16*c*80}')
    a.e(f'v_mov_b32 v{vTMP}, 0x7f000000')
    for dt_ in range(2):
        t=a.ds(f'ds_read_b128 v[10:13], v{vM0} offset:{dt_*1024}')
        for cls in ((None,) if c==0 else (1,0)):
            a.e(f'v_mov_b32 v9, v{vM3}')
            if dt_==1: a.e(f'v_cmp_gt_u32 vcc, 4, v{vM1}'); a.e('s_nop 1'); a.e(f'v_cndmask_b32 v9, v{vTMP}, v9, vcc')
            if cls is not None: a.e(f'v_cmp_ge_u32 vcc, {cls}, v{vM2}'); a.e('s_nop 1'); a.e(f'v_cndmask_b32 v9, v{vTMP}, v9, vcc')
            a.wait_lg(t)
            ii = range(4) if c==0 else ([0] if cls==1 else [1,2,3])
            for i in ii: a.vm(f'buffer_atomic_add_f32 v{10+i}, v9, {sr(srdKV,4)}, s{sT} offen offset:{i*80+dt_*64}')
        a.e('s_nop 1')
LDS_TOTAL=STASH+14336
```

```python
import sys
import k0, k1v4, k1v5, k2v5
import build
def make(fn, opts=None, k2opts=None, k0sf='', w1f=True):
    opts=opts or {}
    K1=k1v4 if w1f else k1v5
    b0,d0=k0.gen_k0(sf=k0sf,stamps=bool(opts.get('stamps')),w1f=w1f); b1,d1=K1.gen_k1(opts=opts); b2,d2=k2v5.gen_k2(**(k2opts or {}))
    hdr='; parallel_sum(linear_attn_block, glu) : 3 launches\n'
    hdr+=f'; @launch kernel=k0_kernel grid=({k0.nwg(w1f)},1,1) block=(256,1,1) lds=16384\n'
    hdr+=f'; @launch kernel=k1_kernel grid=(256,1,1) block=(512,1,1) lds={K1.LDS_TOTAL}\n'
    hdr+='; @launch kernel=k2_kernel grid=(256,1,1) block=(512,1,1) lds=161792\n'
    hdr+='.amdgcn_target "amdgcn-amd-amdhsa--gfx950"\n.text\n'
    open(fn,'w').write(hdr+b0+b1+b2+'code_end_all:\n.set CODE_BYTES_ALL, code_end_all - k0_kernel - 256\n.fill 64, 4, 0xBF800000\n.section .rodata,"a"\n.p2align 6\n'+d0+'.p2align 6\n'+d1+'.p2align 6\n'+d2)
if __name__=='__main__':
    make('k.s',opts=dict(prio=1)); build.build('k.s','k.co')
    make('ks.s',opts=dict(prio=1,stamps=1),k2opts=dict(stamps=True)); build.build('ks.s','ks.co')
```

```python
from asmlib import *
from layout import *
import struct
def f32(x): return '0x%08x'%struct.unpack('<I',struct.pack('<f',x))[0]
NLN=128
def nwg(w1f): return NLN+((740+(1680 if w1f else 0))+3)//4
def gen_k0(name='k0_kernel',sf='',stamps=False,w1f=True):
    a=Asm(); NTASK=740+(1680 if w1f else 0); NWG=nwg(w1f)
    a.e('.p2align 8'); a.e(f'.globl {name}'); a.e(f'.type {name},@function'); a.label(name)
    a.e(f's_cmp_ge_u32 s2, {NWG}'); a.e(f's_cbranch_scc1 {name}_end')
    if stamps: a.e('s_memrealtime s[80:81]')
    a.e('s_load_dwordx16 s[8:23], s[0:1], 0'); a.e('s_load_dwordx2 s[24:25], s[0:1], 72')
    pX,pQKV,pWO,pG,pU,pWD,pWS=8,10,12,16,18,20,24
    a.e('v_and_b32 v1, 63, v0'); a.e('v_lshrrev_b32 v2, 6, v0'); a.e('v_and_b32 v3, 15, v1'); a.e('v_lshrrev_b32 v4, 4, v1')
    a.e('v_readfirstlane_b32 s3, v2')
    a.e('v_lshlrev_b32 v5, 4, v1')
    a.e('s_waitcnt lgkmcnt(0)')
    def mk(srd,ptr,off,size):
        if off: a.e(f's_add_u32 s{srd}, s{ptr}, {off:#x}'); a.e(f's_addc_u32 s{srd+1}, s{ptr+1}, 0')
        else: a.e(f's_mov_b32 s{srd}, s{ptr}'); a.e(f's_mov_b32 s{srd+1}, s{ptr+1}')
        a.e(f's_mov_b32 s{srd+2}, {size:#x}'); a.e(f's_mov_b32 s{srd+3}, 0x20000')
    a.e('s_lshl_b32 s4, s2, 8'); a.e('v_add_u32 v6, s4, v0'); a.e('v_lshlrev_b32 v7, 7, v6')
    if not w1f:
        mk(28,pQKV,0,640*PQ); mk(32,pG,0,640*PG); mk(36,pU,0,640*PG)
        a.e('buffer_load_dword v60, v7, s[28:31], 0 offen'); a.e(f'v_subrev_u32 v7, {640*PQ}, v7')
        a.e('buffer_load_dword v61, v7, s[32:35], 0 offen'); a.e(f'v_subrev_u32 v7, {640*PG}, v7')
        a.e('buffer_load_dword v62, v7, s[36:39], 0 offen'); a.e(f'v_subrev_u32 v7, {640*PG}, v7')
    a.e('s_getpc_b64 s[40:41]'); a.e('s_mov_b32 s42, CODE_BYTES_ALL'); a.e('s_mov_b32 s43, 0x20000')
    a.e('buffer_load_dword v63, v7, s[40:43], 0 offen')
    a.e(f's_cmp_ge_u32 s2, {NLN}'); a.e(f's_cbranch_scc1 {name}_rp')
    mk(40,pX,0,2048*1280); mk(44,pWS,XN_OFF,XN_SZ)
    a.e('s_lshl_b32 s4, s2, 4'); a.e('v_add_u32 v7, s4, v3'); a.e('s_movk_i32 s5, 1280'); a.e('v_mul_lo_u32 v7, v7, s5'); a.e('v_lshl_add_u32 v7, v4, 4, v7')
    a.e('s_mul_i32 s5, s3, 320')
    for i in range(5): t=a.vm(f'buffer_load_dwordx4 {vr(16+4*i,4)}, v7, s[40:43], s5 offen offset:{64*i}')
    a.e('v_mov_b32 v8, 0'); a.e('v_mov_b32 v9, 0')
    a.wait_vm(t)
    for i in range(20):
        a.e(f'v_lshlrev_b32 v{40+2*i}, 16, v{16+i}'); a.e(f'v_and_b32 v{41+2*i}, 0xffff0000, v{16+i}')
        a.e(f'v_add_f32 v8, v8, v{40+2*i}'); a.e(f'v_add_f32 v8, v8, v{41+2*i}')
    for (r,t0) in ((8,10),):
        a.e(f'v_mov_b32 v10, v8'); a.e('s_nop 1'); a.e('v_permlane32_swap_b32 v8, v10'); a.e('s_nop 1'); a.e('v_add_f32 v8, v8, v10')
        a.e(f'v_mov_b32 v10, v8'); a.e('s_nop 1'); a.e('v_permlane16_swap_b32 v8, v10'); a.e('s_nop 1'); a.e('v_add_f32 v8, v8, v10')
    a.e('v_lshlrev_b32 v11, 2, v3'); a.e('s_lshl_b32 s4, s3, 6'); a.e('v_add_u32 v12, s4, v11')
    a.ds('ds_write_b32 v12, v8'); a.wait_all_lg(); a.e('s_barrier')
    for w in range(4): a.ds(f'ds_read_b32 v{80+w}, v11 offset:{64*w}')
    a.wait_all_lg()
    a.e('v_add_f32 v80, v80, v81'); a.e('v_add_f32 v82, v82, v83'); a.e('v_add_f32 v80, v80, v82'); a.e(f'v_mul_f32 v80, {f32(1/640)}, v80')
    for i in range(40):
        a.e(f'v_sub_f32 v{40+i}, v{40+i}, v80'); a.e(f'v_fma_f32 v9, v{40+i}, v{40+i}, v9')
    a.e(f'v_mov_b32 v10, v9'); a.e('s_nop 1'); a.e('v_permlane32_swap_b32 v9, v10'); a.e('s_nop 1'); a.e('v_add_f32 v9, v9, v10')
    a.e(f'v_mov_b32 v10, v9'); a.e('s_nop 1'); a.e('v_permlane16_swap_b32 v9, v10'); a.e('s_nop 1'); a.e('v_add_f32 v9, v9, v10')
    a.ds('ds_write_b32 v12, v9 offset:256'); a.wait_all_lg(); a.e('s_barrier')
    for w in range(4): a.ds(f'ds_read_b32 v{81+w}, v11 offset:{256+64*w}')
    a.wait_all_lg()
    a.e('v_add_f32 v81, v81, v82'); a.e('v_add_f32 v83, v83, v84'); a.e('v_add_f32 v81, v81, v83')
    a.e(f'v_mul_f32 v81, {f32(1/640)}, v81'); a.e(f'v_add_f32 v81, {f32(1e-5)}, v81'); a.e('v_rsq_f32 v81, v81'); a.e('s_nop 0')
    a.e('s_lshr_b32 s4, s2, 1'); a.e('s_mul_i32 s4, s4, 40'); a.e('s_and_b32 s5, s2, 1'); a.e('s_add_u32 s4, s4, s5'); a.e('s_mul_i32 s5, s3, 10'); a.e('s_add_u32 s4, s4, s5'); a.e('s_lshl_b32 s4, s4, 10')
    for i in range(5):
        for j in range(4):
            k=4*i+j
            a.e(f'v_mul_f32 v{40+2*k}, v{40+2*k}, v81'); a.e(f'v_mul_f32 v{41+2*k}, v{41+2*k}, v81')
            a.e(f'v_cvt_pk_bf16_f32 v{16+k}, v{40+2*k}, v{41+2*k}')
        a.vm(f'buffer_store_dwordx4 {vr(16+4*i,4)}, v5, s[44:47], s4 offen{sf}')
        if i<4: a.e('s_add_u32 s4, s4, 2048')
    a.e(f's_branch {name}_fin')
    a.label(f'{name}_rp')
    mk(40,pWO,0,640*1280); mk(44,pWD,0,1728*1280); mk(48,pWS,W2F_OFF,W2F_SZ); mk(52,pWS,KV_OFF,KV_SZ)
    a.e(f's_sub_u32 s4, s2, {NLN}'); a.e('s_lshl_b32 s5, s4, 8'); a.e('v_add_u32 v7, s5, v0'); a.e('v_lshlrev_b32 v7, 4, v7')
    for i in range(4): a.e(f'v_mov_b32 v{8+i}, 0')
    a.e('buffer_store_dwordx4 v[8:11], v7, s[52:55], 0 offen')
    a.e('s_lshl_b32 s4, s4, 2'); a.e('s_add_u32 s4, s4, s3')
    a.e(f's_cmp_ge_u32 s4, {NTASK}'); a.e(f's_cbranch_scc1 {name}_fin')
    mk(28,pQKV,0,640*PQ); mk(32,pG,0,640*PG); mk(36,pU,0,640*PG); mk(64,pWS,W1F_OFF,W1F_SZ)
    a.e('s_mov_b32 s78, 0')
    lw2=a.newlabel('Lw2'); lq=a.newlabel('Lq'); lgo=a.newlabel('Lgo')
    a.e('s_cmp_lt_u32 s4, 740'); a.e(f's_cbranch_scc1 {lw2}')
    a.e('s_cmp_lt_u32 s4, 1340'); a.e(f's_cbranch_scc1 {lq}')
    a.e('s_sub_u32 s4, s4, 1340'); a.e('s_cmp_ge_u32 s4, 540'); a.e('s_cselect_b32 s27, 1, 0')
    for i in range(3): a.e(f's_cselect_b32 s{56+i}, s{36+i}, s{32+i}')
    a.e('s_cselect_b32 s5, 540, 0'); a.e('s_sub_u32 s4, s4, s5')
    a.e('s_mul_i32 s5, s4, 2428'); a.e('s_lshr_b32 s5, s5, 16')
    a.e('s_mul_i32 s6, s5, 27'); a.e('s_sub_u32 s6, s4, s6')
    a.e(f's_mul_i32 s7, s5, {32*PG}'); a.e('s_lshl_b32 s26, s6, 7'); a.e('s_add_u32 s7, s7, s26'); a.e(f's_movk_i32 s26, {PG}')
    a.e('s_lshl_b32 s6, s6, 3'); a.e('s_add_u32 s6, s6, s27'); a.e('s_add_u32 s6, s6, 120'); a.e('s_movk_i32 s68, 4096')
    a.e(f's_branch {lgo}_w1')
    a.label(lq)
    a.e('s_sub_u32 s4, s4, 740')
    for i in range(3): a.e(f's_mov_b32 s{56+i}, s{28+i}')
    a.e('s_mul_i32 s5, s4, 2185'); a.e('s_lshr_b32 s5, s5, 16')
    a.e('s_mul_i32 s6, s5, 30'); a.e('s_sub_u32 s6, s4, s6')
    a.e(f's_mul_i32 s7, s5, {32*PQ}'); a.e('s_lshl_b32 s26, s6, 7'); a.e('s_add_u32 s7, s7, s26'); a.e(f's_movk_i32 s26, {PQ}')
    a.e('s_lshl_b32 s6, s6, 2'); a.e('s_movk_i32 s68, 2048'); a.e('s_mov_b32 s78, s6')
    a.label(f'{lgo}_w1')
    a.e('s_lshr_b32 s27, s5, 1'); a.e('s_mul_i32 s27, s27, 336'); a.e('s_add_u32 s27, s27, s6'); a.e('s_lshl_b32 s27, s27, 11'); a.e('s_and_b32 s5, s5, 1'); a.e('s_lshl_b32 s5, s5, 10'); a.e('s_add_u32 s69, s27, s5')
    for i in range(2): a.e(f's_mov_b32 s{48+i}, s{64+i}')
    a.e(f's_mov_b32 s50, {W1F_SZ:#x}')
    a.e('s_movk_i32 s5, 20')
    a.e(f's_branch {lgo}')
    a.label(lw2)
    a.e('s_mul_i32 s5, s4, 205'); a.e('s_lshr_b32 s5, s5, 11'); a.e('s_mul_i32 s6, s5, 10'); a.e('s_sub_u32 s6, s4, s6')
    a.e('s_lshl_b32 s7, s5, 5'); a.e('s_sub_u32 s26, s5, 20'); a.e('s_lshl_b32 s26, s26, 5')
    a.e('s_cmp_lt_u32 s5, 20')
    for i in range(3): a.e(f's_cselect_b32 s{56+i}, s{40+i}, s{44+i}')
    a.e('s_cselect_b32 s7, s7, s26'); a.e('s_mul_i32 s7, s7, 1280'); a.e('s_lshl_b32 s26, s6, 7'); a.e('s_add_u32 s7, s7, s26')
    a.e('s_mul_i32 s69, s5, 40'); a.e('s_lshl_b32 s27, s6, 2'); a.e('s_add_u32 s69, s69, s27'); a.e('s_lshl_b32 s69, s69, 10'); a.e('s_movk_i32 s68, 1024'); a.e('s_movk_i32 s26, 1280')
    a.label(lgo)
    for i in range(4):
        a.e(f's_mul_i32 s{74+i}, s68, {i}'); a.e(f's_add_u32 s{74+i}, s{74+i}, s69')
    lnr=a.newlabel('Lnr')
    a.e('s_cmp_lt_u32 s78, 40'); a.e(f's_cbranch_scc1 {lnr}'); a.e('s_cmp_ge_u32 s78, 120'); a.e(f's_cbranch_scc1 {lnr}')
    for i in range(4):
        a.e(f's_add_u32 s28, s78, {i}'); a.e('s_sub_u32 s29, s28, 40')
        a.e('s_cmp_ge_u32 s29, 40'); a.e('s_cselect_b32 s30, 1, 0'); a.e('s_cselect_b32 s31, 40, 0'); a.e('s_sub_u32 s29, s29, s31')
        a.e('s_mul_i32 s31, s29, 13'); a.e('s_lshr_b32 s31, s31, 6'); a.e('s_mul_i32 s79, s31, 5'); a.e('s_sub_u32 s29, s29, s79')
        a.e('s_mul_i32 s31, s31, 10'); a.e('s_add_u32 s31, s31, s29'); a.e('s_add_u32 s31, s31, 40')
        a.e('s_mul_i32 s79, s30, 3'); a.e('s_add_u32 s31, s31, s79')
        a.e('s_sub_u32 s79, 3, s30'); a.e('s_cmp_ge_u32 s29, s79'); a.e('s_cselect_b32 s79, 2, 0'); a.e('s_add_u32 s31, s31, s79')
        a.e('s_sub_u32 s31, s31, s28'); a.e('s_lshl_b32 s31, s31, 11'); a.e(f's_add_u32 s{74+i}, s{74+i}, s31')
    a.label(lnr)
    a.e('s_mov_b32 s59, 0x20000')
    a.e('v_lshrrev_b32 v7, 2, v1'); a.e('v_mul_lo_u32 v8, v7, s26')
    a.e('v_lshrrev_b32 v7, 3, v7'); a.e('v_lshlrev_b32 v7, 1, v7'); a.e('v_and_b32 v9, 3, v1'); a.e('v_xor_b32 v7, v7, v9'); a.e('v_lshl_add_u32 v8, v7, 4, v8')
    a.e('s_lshl_b32 s28, s26, 4')
    a.e('s_lshl_b32 s26, s3, 12')
    t=None
    for img in range(2):
        for half in range(2):
            a.e(f's_add_u32 m0, s26, {img*2048+half*1024}')
            a.e(f's_add_u32 s27, s7, {img*64}')
            if half: a.e('s_add_u32 s27, s27, s28')
            t=a.vm('buffer_load_dwordx4 v8, s[56:59], s27 offen lds')
    a.e('v_lshrrev_b32 v9, 2, v3'); a.e('v_and_b32 v10, 3, v3')
    a.e('v_lshl_add_u32 v11, v4, 3, v9'); a.e('v_lshlrev_b32 v11, 6, v11'); a.e('v_and_b32 v12, 1, v4'); a.e('v_lshl_add_u32 v11, v12, 5, v11'); a.e('v_lshl_add_u32 v11, v10, 3, v11')
    a.e('v_add_u32 v13, 256, v11')
    a.e('v_lshl_add_u32 v14, v4, 2, v9'); a.e('v_lshlrev_b32 v14, 6, v14'); a.e('v_lshrrev_b32 v12, 1, v4'); a.e('v_lshl_add_u32 v14, v12, 5, v14'); a.e('v_lshl_add_u32 v14, v10, 3, v14')
    a.e('v_add_u32 v15, 1024, v14')
    a.e('s_cmp_lt_u32 s5, 20'); a.e('s_cselect_b64 vcc, -1, 0')
    a.e('v_cndmask_b32 v11, v11, v14, vcc'); a.e('v_cndmask_b32 v13, v13, v15, vcc')
    a.e('v_add_u32 v11, s26, v11'); a.e('v_add_u32 v13, s26, v13')
    a.e('v_xor_b32 v14, 32, v11'); a.e('v_xor_b32 v15, 32, v13')
    a.wait_vm(t)
    for img in range(2):
        for hf in range(2):
            d=16+4*(2*img+hf)
            a.ds(f'ds_read_b64_tr_b16 {vr(d,2)}, v{14 if hf else 11} offset:{img*2048}')
            a.ds(f'ds_read_b64_tr_b16 {vr(d+2,2)}, v{15 if hf else 13} offset:{img*2048}')
    a.wait_all_lg()
    for i in range(4): a.vm(f'buffer_store_dwordx4 {vr(16+4*i,4)}, v5, s[48:51], s{74+i} offen{sf}')
    a.label(f'{name}_fin')
    if stamps:
        a.e('s_waitcnt vmcnt(0)'); a.e('s_memrealtime s[82:83]'); a.e('s_waitcnt lgkmcnt(0)')
        a.e(f's_add_u32 s52, s24, {STAMP_OFF+0xC0000:#x}'); a.e('s_addc_u32 s53, s25, 0'); a.e('s_mov_b32 s54, 0x40000'); a.e('s_mov_b32 s55, 0x20000')
        a.e('s_lshl_b32 s4, s2, 2'); a.e('s_add_u32 s4, s4, s3'); a.e('s_lshl_b32 s4, s4, 3'); a.e('v_mov_b32 v1, s4'); a.e('v_mov_b32 v2, s80'); a.e('v_mov_b32 v3, s82')
        a.e('buffer_store_dwordx2 v[2:3], v1, s[52:55], 0 offen')
    a.label(f'{name}_end'); a.e('s_endpgm')
    return a.text(), kernel_desc(name,96,96,90)
```

```python
from asmlib import *
from layout import *
import struct
def f32(x): return '0x%08x'%struct.unpack('<I',struct.pack('<f',x))[0]
LOG2E=1.4426950408889634
SLOT0=[0,36864,73728,110592]
SLOT1=[73728,122880,0,98304]
STG=24576
ONES=147456
LDS_TOTAL=148480
PKP=272
PK_B=STG; V_B=STG+80*PKP
KVS=STG+2*80*PKP
def slot(g): return SLOT0[g%4] if g<10 else SLOT1[(g-10)%4]
vF=1
vX=2
vL16=3; vTMP=4; vM0,vM1,vM2,vM3=5,6,7,8
NR=8
RING=16
ACC=48
sW,sR,sC,sRB,sJOB=3,4,5,6,7
pXX,pQKV,pWO,pBX,pG,pU,pWD,pOUT,pDBG,pWS=8,10,12,14,16,18,20,22,24,26
srdX,srdW,srdACT,srdKV,srdST=28,32,36,40,44
sMX,sX0,sMW0,sMW1,sWO0,sWO1=48,49,50,51,52,53
sACT,sP0,sP1=54,55,56
sT=60
sKL,sKN,sK1,sKE=80,82,84,86
class Group:
    def __init__(s,kind,P=0,swapped=False,wofs=0):
        s.kind=kind; s.P=P; s.swapped=swapped; s.wofs=wofs
        s.U = 2*P if kind=='gu' else 5
def groups_of(typ,c):
    if typ=='B':
        return [Group('gu',3,wofs=0),Group('gu',3,wofs=0)] if c==0 else [Group('gu',2,wofs=12288),Group('gu',3,wofs=12288)]
    return [Group('plain',swapped=True,wofs=0),Group('plain',wofs=0)] if c==0 else [Group('plain',swapped=True,wofs=10240),Group('gu',3,wofs=10240)]
class Prog:
    def __init__(p,a,typ,c,opts):
        p.a=a; p.typ=typ; p.c=c; p.o=opts; p.origin={}; p.groups=groups_of(typ,c)
    def addr(p,reg,absoff,base):
        o=p.origin.get(reg,0)
        if not (0<=absoff-o<=65535):
            d=(base-o)&0xffffffff
            p.a.e(f'v_add_u32 v{reg}, {d:#x}, v{reg}'); p.origin[reg]=base; o=base
        return f'v{reg}', absoff-o
    def nW(p,G): return (2*G.U+3)//4
    def dma_ops(p,g,toks):
        a=p.a; grp=g//10; base=slot(g); ops=[]; G=p.groups[grp]
        if p.o.get('nodma') and g>=3: return []
        if grp==0:
            def f():
                a.e(f's_add_u32 m0, s{sMX}, {base+20480:#x}'); a.e(f's_add_u32 s{sX0}, s{sX0}, 4096')
                for i in (2*p.c,2*p.c+1): toks.append(a.vm(f'buffer_load_dwordx4 v{vL16}, {sr(srdX,4)}, s{sX0} offen offset:{i*1024} lds'))
            ops.append(f)
        sM=(sMW0,sMW1)[grp]; sO=(sWO0,sWO1)[grp]
        def f():
            a.e(f's_add_u32 m0, s{sM}, {base+G.wofs:#x}'); a.e(f's_add_u32 s{sO}, s{sO}, {336*2048}')
            for i in range(p.nW(G)): toks.append(a.vm(f'buffer_load_dwordx4 v{vL16}, {sr(srdW,4)}, s{sO} offen offset:{i*1024} lds'))
        ops.append(f)
        return ops

def gen_k1(name='k1_kernel',opts=None):
    opts=opts or {}
    a=Asm()
    a.e('.p2align 8'); a.e(f'.globl {name}'); a.e(f'.type {name},@function'); a.label(name)
    a.e('s_cmp_ge_u32 s2, 256'); a.e(f's_cbranch_scc1 {name}_end')
    a.e('s_load_dwordx2 s[26:27], s[0:1], 72')
    if opts.get('stamps'): a.e('s_memrealtime s[90:91]')
    a.e(f's_getpc_b64 s[{srdST}:{srdST+1}]'); a.e(f's_mov_b32 s{srdST+2}, CODE_BYTES_K1'); a.e(f's_mov_b32 s{srdST+3}, 0x20000')
    a.e('v_lshlrev_b32 v95, 7, v0')
    a.e(f'buffer_load_dword v94, v95, {sr(srdST,4)}, 0 offen')
    a.e(f'v_lshrrev_b32 v48, 6, v0'); a.e(f'v_and_b32 v49, 63, v0')
    a.e(f'v_readfirstlane_b32 s{sW}, v48'); a.e(f'v_lshlrev_b32 v{vL16}, 4, v49')
    a.e(f's_and_b32 s{sT}, s2, 7'); a.e(f's_lshr_b32 s{sT+1}, s2, 3')
    a.e(f's_and_b32 s{sRB}, s{sT}, 1'); a.e(f's_lshl_b32 s{sRB}, s{sRB}, 3'); a.e(f's_and_b32 s{sT+2}, s{sT+1}, 7'); a.e(f's_add_u32 s{sRB}, s{sRB}, s{sT+2}')
    a.e(f's_lshr_b32 s{sJOB}, s{sT}, 1'); a.e(f's_lshl_b32 s{sJOB}, s{sJOB}, 2'); a.e(f's_lshr_b32 s{sT+2}, s{sT+1}, 3'); a.e(f's_add_u32 s{sJOB}, s{sJOB}, s{sT+2}')
    a.e(f's_and_b32 s{sR}, s{sW}, 3'); a.e(f's_lshr_b32 s{sC}, s{sW}, 2')
    a.e(f's_lshl_b32 s{sMX}, s{sR}, 12'); a.e(f's_add_u32 s{sT}, s{sMX}, 20480'); a.e(f'v_add_u32 v{vX}, s{sT}, v{vL16}')
    a.e(f's_lshl_b32 s{sT}, s{sRB}, 2'); a.e(f's_add_u32 s{sT}, s{sT}, s{sR}'); a.e(f's_mul_i32 s{sX0}, s{sT}, {40*1024}'); a.e(f's_sub_u32 s{sX0}, s{sX0}, 4096'); a.e(f's_mul_i32 s{sACT}, s{sT}, {148*1024}')
    a.e(f's_cmp_lt_u32 s{sJOB}, 8'); a.e(f's_cbranch_scc1 {name}_A')
    a.e(f's_cmp_eq_u32 s{sC}, 0'); a.e(f's_cbranch_scc0 {name}_B1'); a.e(f's_branch {name}_B0')
    a.label(f'{name}_A'); a.e(f's_cmp_eq_u32 s{sC}, 0'); a.e(f's_cbranch_scc0 {name}_A1'); a.e(f's_branch {name}_A0')
    for typ,c in (('B',0),('B',1),('A',0),('A',1)):
        a.label(f'{name}_{typ}{c}')
        a.lg_issued=a.lg_done=0; a.vm_issued=a.vm_done=0
        program(a,typ,c,opts)
        a.e(f's_branch {name}_end')
    a.label(f'{name}_end'); a.e('s_endpgm')
    a.e(f'.set CODE_BYTES_K1, {name}_end - {name}')
    return a.text(), kernel_desc(name,256,96)

def program(a,typ,c,opts):
    p=Prog(a,typ,c,opts); G0,G1=p.groups
    nst=[0]
    def mk(srd,ptr,off,size):
        if off: a.e(f's_add_u32 s{srd}, s{ptr}, {off:#x}'); a.e(f's_addc_u32 s{srd+1}, s{ptr+1}, 0')
        else: a.e(f's_mov_b32 s{srd}, s{ptr}'); a.e(f's_mov_b32 s{srd+1}, s{ptr+1}')
        a.e(f's_mov_b32 s{srd+2}, {size:#x}'); a.e(f's_mov_b32 s{srd+3}, 0x20000')
    def stamp():
        if opts.get('stamps'):
            a.e(f's_{"memtime" if opts.get("cyc") else "memrealtime"} s[{sT+12}:{sT+13}]'); a.e('s_waitcnt lgkmcnt(0)'); a.lg_done=a.lg_issued
            a.e(f'v_mov_b32 v{vTMP}, s{sT+12}'); a.e(f's_lshl_b32 s{sT+11}, s2, 3'); a.e(f's_add_u32 s{sT+11}, s{sT+11}, s{sW}'); a.e(f's_lshl_b32 s{sT+11}, s{sT+11}, 7')
            a.e(f'v_mov_b32 v0, s{sT+11}')
            a.vm(f'buffer_store_dword v{vTMP}, v0, {sr(srdST,4)}, 0 offen offset:{4*nst[0]}'); nst[0]+=1
    def barrier(): a.e('s_barrier')
    if typ=='B':
        a.e(f's_sub_u32 s{sT}, s{sJOB}, 8'); a.e(f's_mul_i32 s{sT}, s{sT}, 21'); a.e(f's_lshr_b32 s{sT}, s{sT}, 1'); a.e(f's_add_u32 s{sT}, s{sT}, 24')
        a.e(f's_add_u32 s{sP0}, s{sT}, {0 if c==0 else 3}'); a.e(f's_add_u32 s{sP1}, s{sT}, {5 if c==0 else 8}')
        for grp,sp in ((0,sP0),(1,sP1)): a.e(f's_lshl_b32 s{sT+2+grp}, s{sp}, 1'); a.e(f's_add_u32 s{sT+2+grp}, s{sT+2+grp}, 120')
    else:
        a.e(f's_mul_i32 s{sT}, s{sJOB}, 5'); a.e(f's_mul_i32 s{sP1}, s{sJOB}, 3')
        a.e(f's_lshl_b32 s{sT+2}, s{sT}, 1'); a.e(f's_add_u32 s{sT+2}, s{sT+2}, {40 if c==0 else 45}')
        if c==0: a.e(f's_mov_b32 s{sT+3}, s{sT}')
        else: a.e(f's_lshl_b32 s{sT+3}, s{sP1}, 1'); a.e(f's_add_u32 s{sT+3}, s{sT+3}, 120')
    for grp,G in enumerate(p.groups):
        n=p.nW(G); sM=(sMW0,sMW1)[grp]; sO=(sWO0,sWO1)[grp]
        a.e(f's_mul_i32 s{sT+4}, s{sR}, {n}'); a.e(f's_min_u32 s{sT+4}, s{sT+4}, {2*G.U-n}'); a.e(f's_lshl_b32 s{sM}, s{sT+4}, 10')
        a.e(f's_lshl_b32 s{sO}, s{sT+2+grp}, 11'); a.e(f's_add_u32 s{sO}, s{sO}, s{sM}'); a.e(f's_sub_u32 s{sO}, s{sO}, {336*2048}')
    a.e('s_waitcnt lgkmcnt(0)')
    mk(srdX,pWS,XN_OFF,XN_SZ); mk(srdW,pWS,W1F_OFF,W1F_SZ)
    dt={}
    for g in range(3):
        dt[g]=[]
        for f in p.dma_ops(g,dt[g]): f()
    mk(srdACT,pWS,ACT_OFF,ACT_SZ); mk(srdKV,pWS,KV_OFF,KV_SZ); mk(srdST,pWS,STAMP_OFF,STAMP_SZ)
    a.e(f'v_add_u32 v{vF}, {G0.wofs}, v{vL16}')
    for r_,v_ in ((sKL,LOG2E),(sKN,-LOG2E),(sK1,1.0),(sKE,1e-6)): a.e(f's_mov_b32 s{r_}, {f32(v_)}'); a.e(f's_mov_b32 s{r_+1}, {f32(v_)}')
    if typ=='A' and c==0:
        for i in range(4): a.e(f'v_mov_b32 v{60+i}, 0x3f803f80')
        a.e(f'v_add_u32 v{vTMP}, {ONES}, v{vL16}')
        a.e(f's_cmp_eq_u32 s{sR}, 0'); lz=a.newlabel('Lz'); a.e(f's_cbranch_scc0 {lz}')
        a.e('s_mov_b64 exec, 0xffff'); a.ds(f'ds_write_b128 v{vTMP}, v[60:63]'); a.e('s_mov_b64 exec, -1'); a.label(lz)
        a.wait_all_lg()
    stamp()
    if opts.get('stamps'):
        a.e(f'v_mov_b32 v{vTMP}, s90'); a.vm(f'buffer_store_dword v{vTMP}, v0, {sr(srdST,4)}, 0 offen offset:124')
    xtok={}
    def x_ops(g):
        base=slot(g); ops=[]
        for T in range(2):
            for sg in range(2):
                def f(T=T,sg=sg):
                    r,o=p.addr(vX, base+T*2048+sg*1024, base)
                    xtok[(2*g+T,sg)]=a.ds(f'ds_read_b128 {ar(((2*g+T)*2+sg)*4,4)}, {r} offset:{o}')
                ops.append(f)
        return ops
    a.wait_vm(dt[0][-1]); barrier()
    stamp()
    for f in x_ops(0): f()
    extra={}
    def add_extra(g,f): extra.setdefault(g,[]).append(f)
    ctx=dict(p=p,a=a,typ=typ,c=c,opts=opts,add_extra=add_extra,barrier=barrier,stamp=stamp)
    if typ=='A': add_extra(18,lambda: kv_atomics(ctx))
    pend=[]
    def make_slots(g,nsl):
        R=[[] for _ in range(nsl)]; B=[[] for _ in range(nsl)]
        if g+1<10:
            for i,f in enumerate(x_ops(g+1)): R[i//2].append(f)
        d=[]
        if g+3<20:
            dt[g+3]=[]; d+=p.dma_ops(g+3,dt[g+3])
        for i,f in enumerate(d): B[min(nsl-1,1+(i*nsl)//max(1,len(d)))].append(f)
        for i,f in enumerate(extra.get(g,[])): B[min(nsl-1,2)].append(f)
        return list(zip(R,B))
    DIST=opts.get('dist',NR-1)
    for grp in range(2):
        G=p.groups[grp]; U=G.U; ftok={}
        if grp==1 and G1.wofs!=G0.wofs: raise Exception('wofs')
        def rd_frag(n):
            gl,rem=divmod(n,2*U); T,t=divmod(rem,U); base=slot(grp*10+gl)
            r,o=p.addr(vF, base+(t*2+T)*1024, base)
            ftok[n]=a.ds(f'ds_read_b128 {vr(RING+4*(n%NR),4)}, {r} offset:{o}')
        N=20*U; st=dict(nxt=0)
        def prefetch(ok,n):
            while st['nxt']<min(N,n+DIST+1) and (st['nxt']//(2*U))<=ok:
                rd_frag(st['nxt']); st['nxt']+=1
        stage_ok=0
        prefetch(0,-1)
        for n in range(N):
            gl,rem=divmod(n,2*U); T,t=divmod(rem,U); g=grp*10+gl
            if rem==0 and gl in (0,2,4,6,8): stamp()
            cur = pend.pop(0) if pend else ([],[])
            prefetch(stage_ok,n-1)
            a.wait_lg(ftok[n])
            mf=[]
            for sg in range(2):
                if grp==0: a.wait_lg(xtok[(2*gl+T,sg)])
                acc=vr(ACC+(2*t+sg)*4,4); W=vr(RING+4*(n%NR),4); X=ar(((2*gl+T)*2+sg)*4,4)
                C='0' if (gl==0 and T==0) else acc
                mf.append(f'v_mfma_f32_16x16x32_bf16 {acc}, {X}, {W}, {C}' if G.swapped else f'v_mfma_f32_16x16x32_bf16 {acc}, {W}, {X}, {C}')
            a.e(mf[0])
            if opts.get('prio'): a.e('s_setprio 1')
            prefetch(stage_ok,n)
            for f in cur[0]: f()
            a.e(mf[1])
            if opts.get('prio'): a.e('s_setprio 0')
            for f in cur[1]: f()
            if rem==U-1 and g+1<20:
                assert not pend
                a.wait_vm(dt[g+1][-1] if dt[g+1] else None)
                barrier(); stage_ok=gl+1
                pend=make_slots(g,U+p.groups[(g+1)//10].U)
        stamp()
        epilogue(ctx,grp)
        stamp()
    a.wait_all_vm() if opts.get('stamps') else None
    stamp()

def phi4(a,r0):
    T=RING
    for i in (0,2): a.e(f'v_pk_mul_f32 v[{T+i}:{T+i+1}], v[{r0+i}:{r0+i+1}], s[{sKL}:{sKL+1}]')
    for i in range(4): a.e(f'v_exp_f32_e64 v{T+i}, v{T+i} clamp')
    for i in (0,2): a.e(f'v_pk_add_f32 v[{r0+i}:{r0+i+1}], v[{r0+i}:{r0+i+1}], s[{sKE}:{sKE+1}]')
    for i in range(4): a.e(f'v_max_f32 v{r0+i}, s{sKE}, v{r0+i}')
    for i in (0,2): a.e(f'v_pk_add_f32 v[{r0+i}:{r0+i+1}], v[{r0+i}:{r0+i+1}], v[{T+i}:{T+i+1}]')
SF=['']
def store_tile(a,rA,rB,dst4,soff,off):
    a.e(f'v_cvt_pk_bf16_f32 v{dst4}, v{rA}, v{rA+1}'); a.e(f'v_cvt_pk_bf16_f32 v{dst4+1}, v{rA+2}, v{rA+3}')
    a.e(f'v_cvt_pk_bf16_f32 v{dst4+2}, v{rB}, v{rB+1}'); a.e(f'v_cvt_pk_bf16_f32 v{dst4+3}, v{rB+2}, v{rB+3}')
    a.e('s_nop 1')
    a.e(f'v_permlane16_swap_b32 v{dst4}, v{dst4+2}'); a.e(f'v_permlane16_swap_b32 v{dst4+1}, v{dst4+3}')
    a.e('s_nop 0')
    a.vm(f'buffer_store_dwordx4 {vr(dst4,4)}, v{vL16}, {sr(srdACT,4)}, s{soff} offen offset:{off}{SF[0]}')
KVST=STG+2*80*PKP
def epilogue(ctx,grp):
    a=ctx['a']; p=ctx['p']; G=p.groups[grp]; c=ctx['c']
    a.nop(6)
    SF[0]=ctx['opts'].get('sf%d'%grp,'')
    if G.kind=='gu':
        sP=(sP0,sP1)[grp]
        a.e(f's_lshl_b32 s{sT}, s{sP}, 10'); a.e(f's_add_u32 s{sT}, s{sT}, s{sACT}'); a.e(f's_add_u32 s{sT}, s{sT}, {40*1024}')
        for j in range(G.P):
            for sg in range(2):
                g0=ACC+(4*j+sg)*4; u0=ACC+(4*j+2+sg)*4
                for i in (0,2): a.e(f'v_pk_mul_f32 v[{g0+i}:{g0+i+1}], v[{g0+i}:{g0+i+1}], s[{sKN}:{sKN+1}]')
                for i in range(4): a.e(f'v_exp_f32 v{g0+i}, v{g0+i}')
                a.e('s_nop 0')
                for i in (0,2): a.e(f'v_pk_add_f32 v[{g0+i}:{g0+i+1}], v[{g0+i}:{g0+i+1}], s[{sK1}:{sK1+1}]')
                for i in range(4): a.e(f'v_rcp_f32 v{g0+i}, v{g0+i}')
                a.e('s_nop 0')
                for i in (0,2): a.e(f'v_pk_mul_f32 v[{u0+i}:{u0+i+1}], v[{u0+i}:{u0+i+1}], v[{g0+i}:{g0+i+1}]')
            store_tile(a,ACC+(4*j+2)*4,ACC+(4*j+3)*4,RING+4+4*(j%2),sT,j*1024)
    elif not G.swapped:
        a.e(f's_mul_i32 s{sT}, s{sJOB}, {5*1024}'); a.e(f's_add_u32 s{sT}, s{sT}, s{sACT}'); a.e(f's_add_u32 s{sT+1}, s{sT}, 4096')
        for t in range(5):
            for sg in range(2): phi4(a,ACC+(2*t+sg)*4)
            store_tile(a,ACC+(2*t)*4,ACC+(2*t+1)*4,RING+4+4*(t%2),sT if t<4 else sT+1,(t%4)*1024)
    else:
        ctx['barrier']()
        tl = [('k',0),('k',1),('k',2),('v',0),('v',1)] if c==0 else [('k',3),('k',4),('v',2),('v',3),('v',4)]
        a.e(f'v_bfe_u32 v{vM0}, v{vL16}, 4, 4'); a.e(f's_movk_i32 s{sT}, {PKP}'); a.e(f'v_mul_lo_u32 v{vM0}, v{vM0}, s{sT}')
        a.e(f'v_lshrrev_b32 v{vM1}, 8, v{vL16}'); a.e(f'v_lshl_add_u32 v{vM0}, v{vM1}, 3, v{vM0}')
        a.e(f's_lshl_b32 s{sT}, s{sR}, 6'); a.e(f's_add_u32 s{sT}, s{sT}, {PK_B}'); a.e(f'v_add_u32 v{vM0}, s{sT}, v{vM0}')
        for t,(kind,idx) in enumerate(tl):
            for sg in range(2):
                r0=ACC+(2*t+sg)*4
                if kind=='k': phi4(a,r0)
                d=RING+4+2*((2*t+sg)%4)
                a.e(f'v_cvt_pk_bf16_f32 v{d}, v{r0}, v{r0+1}'); a.e(f'v_cvt_pk_bf16_f32 v{d+1}, v{r0+2}, v{r0+3}')
                a.ds(f'ds_write_b64 v{vM0}, {vr(d,2)} offset:{(0 if kind=="k" else V_B-PK_B)+16*idx*PKP+32*sg}')
        a.wait_all_lg(); ctx['barrier']()
        a.e(f'v_bfe_u32 v{vM1}, v{vL16}, 4, 4')
        a.e(f'v_lshrrev_b32 v{vM2}, 8, v{vL16}'); a.e(f'v_lshlrev_b32 v{vM2}, 4, v{vM2}')
        a.e(f's_mul_i32 s{sT}, s{sR}, {20*PKP}'); a.e(f's_movk_i32 s{sT+1}, {PKP}')
        a.e(f'v_mul_lo_u32 v{vM0}, v{vM1}, s{sT+1}'); a.e(f'v_add_u32 v{vM0}, s{sT}, v{vM0}'); a.e(f'v_add_u32 v{vM0}, v{vM0}, v{vM2}')
        a.e(f'v_add_u32 v{vM3}, {PK_B}, v{vM0}')
        a.e(f'v_add_u32 v{vM0}, {V_B+16*c*PKP}, v{vM0}')
        if c==1:
            a.e(f'v_add_u32 v{vM2}, {ONES}, v{vM2}'); a.e(f'v_cmp_lt_u32 vcc, 3, v{vM1}'); a.e('s_nop 1'); a.e(f'v_cndmask_b32 v{vM0}, v{vM0}, v{vM2}, vcc')
        AF=RING; BF=RING+16
        for ks in range(4): a.ds(f'ds_read_b128 {vr(AF+4*ks,4)}, v{vM0} offset:{64*ks}')
        D=ACC+32; tk={}
        for dt_ in range(2):
            for ks in range(4): tk[(dt_,ks)]=a.ds(f'ds_read_b128 {vr(BF+4*ks if dt_==0 else ACC+16+4*ks,4)}, v{vM3} offset:{dt_*16*PKP+64*ks}')
        for dt_ in range(2):
            for ks in range(4):
                a.wait_lg(tk[(dt_,ks)])
                B=vr(BF+4*ks if dt_==0 else ACC+16+4*ks,4)
                a.e(f'v_mfma_f32_16x16x32_bf16 {vr(D+4*dt_,4)}, {vr(AF+4*ks,4)}, {B}, {"0" if ks==0 else vr(D+4*dt_,4)}')
        a.e(f's_lshl_b32 s{sT}, s{sW}, 11'); a.e(f's_add_u32 s{sT}, s{sT}, {STASH}'); a.e(f's_cmp_eq_u32 s{sW}, 7'); a.e(f's_cselect_b32 s{sT}, 68096, s{sT}'); a.e(f'v_add_u32 v{vM0}, s{sT}, v{vL16}')
        a.nop(6)
        for dt_ in range(2): a.ds(f'ds_write_b128 v{vM0}, {vr(D+4*dt_,4)} offset:{dt_*1024}')
        a.wait_all_lg()
STASH=ONES+1024
def kv_atomics(ctx):
    a=ctx['a']; c=ctx['c']
    D=9
    a.e(f's_lshl_b32 s{sT}, s{sW}, 11'); a.e(f's_add_u32 s{sT}, s{sT}, {STASH}'); a.e(f's_cmp_eq_u32 s{sW}, 7'); a.e(f's_cselect_b32 s{sT}, 68096, s{sT}'); a.e(f'v_add_u32 v{vM0}, s{sT}, v{vL16}')
    a.e(f'v_bfe_u32 v{vM1}, v{vL16}, 4, 4'); a.e(f'v_lshrrev_b32 v{vM2}, 8, v{vL16}')
    a.e(f'v_mul_u32_u24 v{vM3}, 320, v{vM2}'); a.e(f'v_lshl_add_u32 v{vM3}, v{vM1}, 2, v{vM3}')
    a.e(f's_lshl_b32 s{sT}, s{sJOB}, 2'); a.e(f's_add_u32 s{sT}, s{sT}, s{sR}'); a.e(f's_mul_i32 s{sT}, s{sT}, {KV_HSTRIDE}'); a.e(f's_add_u32 s{sT}, s{sT}, {16*c*80}')
    a.e(f'v_mov_b32 v{vTMP}, 0x7f000000')
    for dt_ in range(2):
        t=a.ds(f'ds_read_b128 v[10:13], v{vM0} offset:{dt_*1024}')
        for cls in ((None,) if c==0 else (1,0)):
            a.e(f'v_mov_b32 v9, v{vM3}')
            if dt_==1: a.e(f'v_cmp_gt_u32 vcc, 4, v{vM1}'); a.e('s_nop 1'); a.e(f'v_cndmask_b32 v9, v{vTMP}, v9, vcc')
            if cls is not None: a.e(f'v_cmp_ge_u32 vcc, {cls}, v{vM2}'); a.e('s_nop 1'); a.e(f'v_cndmask_b32 v9, v{vTMP}, v9, vcc')
            a.wait_lg(t)
            ii = range(4) if c==0 else ([0] if cls==1 else [1,2,3])
            for i in ii: a.vm(f'buffer_atomic_add_f32 v{10+i}, v9, {sr(srdKV,4)}, s{sT} offen offset:{i*80+dt_*64}')
        a.e('s_nop 1')
LDS_TOTAL=STASH+14336
```

```python
from asmlib import *
from layout import *
from k2v2 import et_ks,FRAGS,FIDX,IMG_SZ,ZIMG,kv_table,f32
OFR=4*IMG_SZ
NPO=20
def gen_k2(name='k2_kernel', NS=4, stamps=False, rot=True):
    a=Asm(); nst=[0]
    def stamp():
        if stamps: a.e(f's_memrealtime s[{64+2*nst[0]}:{65+2*nst[0]}]'); nst[0]+=1
    a.e(f'.p2align 8'); a.e(f'.globl {name}'); a.e(f'.type {name},@function'); a.label(name)
    a.e('s_cmp_ge_u32 s2, 256'); a.e(f's_cbranch_scc1 {name}_end')
    stamp()
    a.e('s_load_dwordx2 s[4:5], s[0:1], 0'); a.e('s_load_dwordx2 s[6:7], s[0:1], 56'); a.e('s_load_dwordx2 s[8:9], s[0:1], 72')
    a.e('s_getpc_b64 s[40:41]'); a.label(f'{name}_pc')
    a.e(f's_mov_b32 s42, {name}_tabend - {name}_pc'); a.e('s_mov_b32 s43, 0x20000')
    a.e('v_lshlrev_b32 v1, 7, v0'); a.e('buffer_load_dword v175, v1, s[40:43], 0 offen')
    a.e('v_and_b32 v1, 63, v0'); a.e('v_lshrrev_b32 v2, 6, v0'); a.e('v_and_b32 v3, 15, v1'); a.e('v_lshrrev_b32 v4, 4, v1')
    a.e('v_readfirstlane_b32 s3, v2')
    a.e('v_lshrrev_b32 v5, 1, v4'); a.e('v_lshlrev_b32 v5, 10, v5'); a.e('v_and_b32 v6, 1, v4'); a.e('v_lshlrev_b32 v6, 9, v6'); a.e('v_lshlrev_b32 v7, 4, v3')
    a.e('v_add3_u32 v5, v5, v6, v7'); a.e('v_lshlrev_b32 v6, 4, v1'); a.e('v_add_u32 v7, 0x1000, v6')
    a.e('s_and_b32 s10, s2, 7'); a.e('s_lshr_b32 s11, s2, 3')
    a.e('s_lshr_b32 s12, s10, 1'); a.e('s_lshl_b32 s12, s12, 3'); a.e('s_and_b32 s13, s11, 7'); a.e('s_add_u32 s12, s12, s13')
    a.e('s_and_b32 s13, s10, 1'); a.e('s_lshl_b32 s13, s13, 2'); a.e('s_lshr_b32 s14, s11, 3'); a.e('s_add_u32 s13, s13, s14')
    a.e('s_and_b32 s44, s3, 3')
    a.e('s_mul_i32 s14, s44, 13'); a.e('s_min_u32 s15, s44, 2'); a.e('s_add_u32 s14, s14, s15')
    a.e('s_cmp_lt_u32 s44, 2'); a.e('s_cselect_b32 s45, 14, 13')
    a.e('s_add_u32 s46, s12, s13'); a.e('s_and_b32 s46, s46, 3'); a.e(f's_mul_i32 s46, s46, {3 if rot else 0}')
    sAH,sAO,sBH,sBO=16,48,20,21
    a.e('s_mul_i32 s22, s12, 296'); a.e('s_lshl_b32 s22, s22, 10')
    a.e('s_lshl_b32 s23, s14, 11'); a.e(f's_add_u32 s23, s23, {40*1024}'); a.e('s_add_u32 s23, s23, s22')
    a.e('s_mul_i32 s15, s44, 10240'); a.e('s_add_u32 s22, s22, s15')
    for j in range(4):
        a.e(f's_add_u32 s15, s44, {j}'); a.e(f's_bitcmp1_b32 s15, 1'); a.e(f's_cselect_b32 s53, {148*1024}, 0'); a.e('s_bitcmp1_b32 s15, 0'); a.e('s_cselect_b32 s15, 0x100, 0'); a.e('s_add_u32 s15, s15, s53')
        a.e(f's_add_u32 s{sAH+j}, s23, s15'); a.e(f's_add_u32 s{sAO+j}, s22, s15')
    a.e(f's_add_u32 s{sBH}, s14, {NPO}'); a.e(f's_mul_i32 s{sBH}, s{sBH}, 40'); a.e('s_mul_i32 s15, s13, 5'); a.e(f's_add_u32 s{sBH}, s{sBH}, s15'); a.e(f's_lshl_b32 s{sBH}, s{sBH}, 10')
    a.e(f's_mul_i32 s{sBO}, s44, 200'); a.e(f's_add_u32 s{sBO}, s{sBO}, s15'); a.e(f's_lshl_b32 s{sBO}, s{sBO}, 10')
    a.e('s_lshl_b32 s15, s12, 6'); a.e('s_lshl_b32 s22, s44, 4'); a.e('s_add_u32 s15, s15, s22')
    a.e('v_add_u32 v8, s15, v3'); a.e('s_movk_i32 s15, 1280'); a.e('v_mul_lo_u32 v8, v8, s15')
    a.e('s_mul_i32 s15, s13, 160'); a.e('v_lshlrev_b32 v9, 3, v4'); a.e('v_add3_u32 v8, v8, v9, s15')
    a.e(f's_mul_i32 s52, s44, {IMG_SZ}')
    a.e(f's_mul_i32 s15, s44, 20480'); a.e(f's_add_u32 s15, s15, {OFR}'); a.e('v_add_u32 v20, s15, v6')
    a.e('s_waitcnt lgkmcnt(0)')
    def mk(srd,p,off,size):
        if off: a.e(f's_add_u32 s{srd}, s{p}, {off:#x}'); a.e(f's_addc_u32 s{srd+1}, s{p+1}, 0')
        else: a.e(f's_mov_b32 s{srd}, s{p}'); a.e(f's_mov_b32 s{srd+1}, s{p+1}')
        a.e(f's_mov_b32 s{srd+2}, {size:#x}'); a.e(f's_mov_b32 s{srd+3}, 0x20000')
    mk(24,8,ACT_OFF,ACT_SZ); mk(28,8,W2F_OFF,W2F_SZ); mk(32,4,0,2048*1280); mk(36,6,0,2048*1280); mk(56,8,KV_OFF,KV_SZ)
    ACTs,W2s,Xs,OUTs,KVs='s[24:27]','s[28:31]','s[32:35]','s[36:39]','s[56:59]'
    FB=24
    def fr(si,i): return FB+36*si+4*i
    a.e('s_cmp_lt_u32 s3, 4'); a.e(f's_cbranch_scc0 {name}_H')
    NH=14; toks={}
    a.e('s_mov_b32 s47, s46'); a.e('s_setprio 3')
    def issue_h(p):
        si=p%NS
        a.e('s_lshl_b32 s22, s47, 11'); a.e('s_mul_i32 s23, s47, 40960')
        if p==NH-1:
            a.e('s_cmp_lt_u32 s44, 2'); a.e('s_cselect_b32 s22, s22, 0x7f000000'); a.e('s_cselect_b32 s23, s23, 0x7f000000')
        for j in range(4): a.e(f's_add_u32 s{60+j}, s{sAH+j}, s22') if False else None
        a.e(f'v_add_u32 v21, s22, v5'); a.e(f'v_add_u32 v22, s23, v6'); a.e(f'v_add_u32 v23, 0x1000, v22')
        for k,i in [('A',0),('B',0),('A',1),('B',1),('A',2),('B',2),('A',3),('B',3),('B',4)]:
            if k=='A': t=a.vm(f'buffer_load_dwordx4 {vr(fr(si,i),4)}, v21, {ACTs}, s{sAH+i} offen')
            else: t=a.vm(f'buffer_load_dwordx4 {vr(fr(si,4+i),4)}, v{23 if i==4 else 22}, {W2s}, s{sBH} offen' + (f' offset:{i*1024}' if 0<i<4 else ''))
        toks[p]=t
        a.e('s_add_u32 s47, s47, 1'); a.e('s_cmp_ge_u32 s47, s45'); a.e('s_cselect_b32 s47, 0, s47')
    def issue_o(m):
        si=(NH+m)%NS
        for i in range(5): t=a.vm(f'buffer_load_dwordx4 {vr(fr(si,4+i),4)}, v{7 if i==4 else 6}, {W2s}, s{sBO} offen' + (f' offset:{i*1024}' if 0<i<4 else ''))
        toks[NH+m]=t
        a.e(f's_add_u32 s{sBO}, s{sBO}, 40960')
    def issue(p):
        if p<NH: issue_h(p)
        elif p<NH+5: issue_o(p-NH)
    for p in range(NS): issue(p)
    a.e('s_setprio 0')
    xt=None
    for nt in range(5): xt=a.vm(f'buffer_load_dwordx2 {vr(10+2*nt,2)}, v8, {Xs}, 0 offen offset:{nt*32}')
    stamp()
    for p in range(NH+5):
        si=p%NS
        if p==NH: a.e('s_barrier')
        if p>=NH:
            for j in range(4): lt=a.ds(f'ds_read_b128 {vr(fr(si,j),4)}, v20 offset:{((p-NH)*4+j)*1024}')
        a.wait_vm(toks[p])
        if p>=NH: a.wait_lg(lt)
        if p in (0,6,12): stamp()
        for nt in range(5):
            for j in range(4):
                acc=ar(16*nt+4*j,4)
                a.e(f'v_mfma_f32_16x16x32_bf16 {acc}, {vr(fr(si,4+nt),4)}, {vr(fr(si,j),4)}, {"0" if p==0 else acc}')
        issue(p+NS)
    stamp()
    a.nop(6); a.e('s_barrier')
    R=FB
    for j in range(1,4):
        a.e(f's_add_u32 s15, s44, {j}'); a.e('s_and_b32 s15, s15, 3'); a.e('s_mul_i32 s15, s15, 15360'); a.e(f's_add_u32 s15, s15, {(j-1)*5120}'); a.e(f'v_add_u32 v{168+j}, s15, v6')
        for nt in range(5): a.ds(f'ds_write_b128 v{168+j}, {ar(16*nt+4*j,4)} offset:{nt*1024}')
    for nt in range(5):
        for i in range(4): a.e(f'v_accvgpr_read_b32 v{R+60+4*nt+i}, a{16*nt+i}')
    a.e('s_mul_i32 s15, s44, 15360'); a.e('v_add_u32 v168, s15, v6')
    a.wait_all_lg(); a.e('s_barrier')
    for src in range(3):
        for nt in range(5): a.ds(f'ds_read_b128 {vr(R+20*src+4*nt,4)}, v168 offset:{src*5120+nt*1024}')
    a.wait_vm(xt)
    X=R+80
    for nt in range(5):
        xr=10+2*nt
        a.e(f'v_lshlrev_b32 v{X}, 16, v{xr}'); a.e(f'v_and_b32 v{X+1}, 0xffff0000, v{xr}'); a.e(f'v_lshlrev_b32 v{X+2}, 16, v{xr+1}'); a.e(f'v_and_b32 v{X+3}, 0xffff0000, v{xr+1}')
        for i in range(4): a.e(f'v_add_f32 v{R+60+4*nt+i}, v{R+60+4*nt+i}, v{X+i}')
    a.wait_all_lg()
    for nt in range(5):
        for i in range(4):
            r0=R+4*nt+i
            a.e(f'v_add_f32 v{r0}, v{r0}, v{r0+20}'); a.e(f'v_add_f32 v{r0+40}, v{r0+40}, v{r0+60}')
        for i in range(4): a.e(f'v_add_f32 v{R+4*nt+i}, v{R+4*nt+i}, v{R+4*nt+i+40}')
        a.e(f'v_cvt_pk_bf16_f32 v{X+4+2*nt}, v{R+4*nt}, v{R+4*nt+1}'); a.e(f'v_cvt_pk_bf16_f32 v{X+5+2*nt}, v{R+4*nt+2}, v{R+4*nt+3}')
        a.vm(f'buffer_store_dwordx2 {vr(X+4+2*nt,2)}, v8, {OUTs}, 0 offen offset:{nt*32}')
    def fin_stamps():
        if stamps:
            a.wait_all_vm(); stamp(); a.e('s_waitcnt lgkmcnt(0)')
            a.e(f's_add_u32 s36, s8, {STAMP_OFF+0x80000:#x}'); a.e('s_addc_u32 s37, s9, 0'); a.e('s_mov_b32 s38, 0x40000'); a.e('s_mov_b32 s39, 0x20000')
            a.e('s_lshl_b32 s15, s2, 3'); a.e('s_add_u32 s15, s15, s3'); a.e('s_lshl_b32 s15, s15, 5'); a.e('v_mov_b32 v1, s15')
            for i in range(nst[0]): a.e(f'v_mov_b32 v2, s{64+2*i}'); a.e(f'buffer_store_dword v2, v1, s[36:39], 0 offen offset:{4*i}')
    fin_stamps()
    a.e(f's_branch {name}_end')
    a.label(f'{name}_H'); a.lg_issued=a.lg_done=0; a.vm_issued=a.vm_done=0; nst[0]=1
    KVR=24; KVT=80; AFR=96; BFR=112; DEN=128; NUM=24
    a.e('s_setprio 1')
    a.e('v_cmp_le_u32 s[54:55], 1, v4'); a.e('v_cmp_le_u32 s[60:61], 2, v4'); a.e('v_cmp_le_u32 s[62:63], 3, v4')
    mask={1:'s[54:55]',2:'s[60:61]',3:'s[62:63]'}
    a.e('s_mul_i32 s53, s44, %d'%(8*KV_HSTRIDE))
    a.e(f'v_lshlrev_b32 v13, 2, v1'); a.e(f'v_add_u32 v13, {name}_tab - {name}_pc, v13')
    for m in range(14):
        a.vm(f'buffer_load_dwordx4 {vr(KVR+4*m,4)}, v6, {KVs}, s53 offen offset:{(m%4)*1024}')
        kvt=a.vm(f'buffer_load_dword v{KVT+m}, v13, s[40:43], 0 offen offset:{m*256}')
        if m%4==3: a.e('s_add_u32 s53, s53, 4096')
    for ks in range(5):
        for j in range(4): pqt=a.vm(f'buffer_load_dwordx4 {ar((ks*4+j)*4,4)}, v5, {ACTs}, s{sAO+j} offen offset:{(ks%2)*2048}')
        if ks in (1,3):
            for j in range(4): a.e(f's_add_u32 s{sAO+j}, s{sAO+j}, 4096')
    for i in range(4): a.e(f'v_mov_b32 v{16+i}, 0')
    a.e('v_add_u32 v14, s52, v6')
    for i in range(19): a.ds(f'ds_write_b128 v14, v[16:19] offset:{i*1024}')
    a.e('s_mov_b32 exec_hi, 0'); a.ds(f'ds_write_b128 v14, v[16:19] offset:{19*1024}'); a.e('s_mov_b32 exec_hi, -1')
    a.e('v_and_b32 v15, 3, v1'); a.e('v_lshlrev_b32 v15, 6, v15'); a.e('v_lshl_add_u32 v15, v4, 4, v15'); a.e('v_add_u32 v15, s52, v15')
    a.wait_vm(kvt)
    for m in range(14):
        r=KVR+4*m
        a.e(f'v_cvt_pk_bf16_f32 v{r}, v{r}, v{r+1}'); a.e(f'v_cvt_pk_bf16_f32 v{r+1}, v{r+2}, v{r+3}')
        a.e(f'v_cmp_ne_u32 vcc, -1, v{KVT+m}'); a.e(f'v_add_u32 v{KVT+m}, s52, v{KVT+m}')
        a.e(f's_and_saveexec_b64 s[22:23], vcc'); a.ds(f'ds_write_b64 v{KVT+m}, {vr(r,2)}'); a.e('s_mov_b64 exec, s[22:23]')
    a.wait_all_lg(); a.wait_vm(pqt)
    stamp()
    for xy in range(2):
        for k in range(3): t=a.ds(f'ds_read_b128 {vr(AFR+4*k,4)}, v15 offset:{ZIMG+(xy*3+k)*256}')
        a.wait_lg(t)
        for k in range(3):
            for j in range(4):
                acc=vr(DEN+j*8+xy*4,4)
                a.e(f'v_mfma_f32_16x16x32_bf16 {acc}, {vr(AFR+4*k,4)}, {ar(((k+2*xy)*4+j)*4,4)}, {"0" if k==0 else acc}')
    def num(m):
        fl=[(e2,ks) for e2 in range(2) for ks in et_ks(2*m+e2)]
        for i,(e2,ks) in enumerate(fl): t=a.ds(f'ds_read_b128 {vr(AFR+4*i,4)}, v14 offset:{FIDX[(2*m+e2,ks)]*1024}')
        a.wait_lg(t); seen=set()
        for i,(e2,ks) in enumerate(fl):
            for j in range(4):
                acc=vr(NUM+32*(m%2)+j*8+e2*4,4)
                a.e(f'v_mfma_f32_16x16x32_bf16 {acc}, {vr(AFR+4*i,4)}, {ar((ks*4+j)*4,4)}, {"0" if e2 not in seen else acc}')
            seen.add(e2)
    num(0)
    for i in range(32): a.e(f'v_add_f32 v{DEN+i}, {f32(1e-6)}, v{DEN+i}')
    for i in range(32): a.e(f'v_rcp_f32 v{DEN+i}, v{DEN+i}')
    for m in range(5):
        if m<4: num(m+1)
        else: a.nop(8)
        for j in range(4):
            for e2 in range(2):
                et=2*m+e2; hs=[(4*et+q)//5 for q in range(4)]
                src=f'v{DEN+j*8+hs[0]}'
                for q in range(1,4):
                    if hs[q]!=hs[q-1]: a.e(f'v_cndmask_b32 v16, {src}, v{DEN+j*8+hs[q]}, {mask[q]}'); src='v16'
                r=NUM+32*(m%2)+j*8+e2*4
                for i in range(4): a.e(f'v_mul_f32 v{r+i}, v{r+i}, {src}')
                a.e(f'v_cvt_pk_bf16_f32 v{BFR+4*j+2*e2}, v{r}, v{r+1}'); a.e(f'v_cvt_pk_bf16_f32 v{BFR+4*j+2*e2+1}, v{r+2}, v{r+3}')
            a.ds(f'ds_write_b128 v20, {vr(BFR+4*j,4)} offset:{(m*4+j)*1024}')
    a.wait_all_lg()
    stamp()
    a.e('s_barrier'); a.e('s_barrier'); a.e('s_barrier')
    fin_stamps()
    a.label(f'{name}_end'); a.e('s_endpgm')
    a.e('.p2align 2'); a.label(f'{name}_tab')
    tab=kv_table()
    for i in range(0,len(tab),8): a.e('.long '+','.join(f'{x:#x}' for x in tab[i:i+8]))
    a.label(f'{name}_tabend')
    return a.text(), kernel_desc(name,256,176)
```

```python
import sys
import k0, k1v4, k1v5, k2v5
import build
def make(fn, opts=None, k2opts=None, k0sf='', w1f=True):
    opts=opts or {}
    K1=k1v4 if w1f else k1v5
    b0,d0=k0.gen_k0(sf=k0sf,stamps=bool(opts.get('stamps')),w1f=w1f); b1,d1=K1.gen_k1(opts=opts); b2,d2=k2v5.gen_k2(**(k2opts or {}))
    hdr='; parallel_sum(linear_attn_block, glu) : 3 launches\n'
    hdr+=f'; @launch kernel=k0_kernel grid=({k0.nwg(w1f)},1,1) block=(256,1,1) lds=16384\n'
    hdr+=f'; @launch kernel=k1_kernel grid=(256,1,1) block=(512,1,1) lds={K1.LDS_TOTAL}\n'
    hdr+='; @launch kernel=k2_kernel grid=(256,1,1) block=(512,1,1) lds=161792\n'
    hdr+='.amdgcn_target "amdgcn-amd-amdhsa--gfx950"\n.text\n'
    open(fn,'w').write(hdr+b0+b1+b2+'code_end_all:\n.set CODE_BYTES_ALL, code_end_all - k0_kernel - 256\n.fill 64, 4, 0xBF800000\n.section .rodata,"a"\n.p2align 6\n'+d0+'.p2align 6\n'+d1+'.p2align 6\n'+d2)
BEST=dict(prio=1,sf0=' sc1',sf1=' sc1')
if __name__=='__main__':
    make('k.s',opts=dict(BEST)); build.build('k.s','k.co')
    o=dict(BEST); o['stamps']=1
    make('ks.s',opts=o,k2opts=dict(stamps=True)); build.build('ks.s','ks.co')
```
